```python
import torch

def _softmax(x, axis=-1):
    return torch.softmax(x, dim=axis)
def _gelu(x):
    return torch.nn.functional.gelu(x, approximate="tanh")
def _silu(x):
    return torch.nn.functional.silu(x)
def _sigmoid(x):
    return torch.sigmoid(x)
def _layernorm(x, axis=-1, eps=1e-5):
    m = x.mean(dim=axis, keepdim=True)
    v = x.var(dim=axis, keepdim=True, unbiased=False)
    return (x - m) / torch.sqrt(v + eps)
def _scatter_add(tgt, idx, src, axis=0):
    return tgt.clone().index_add_(axis, idx, src)
def _segment_sum(src, seg, n):
    out = torch.zeros((n,) + src.shape[1:], dtype=src.dtype)
    return out.index_add_(0, seg, src)
def _pad(x, pw):
    flat = tuple(v for pair in reversed(pw) for v in pair)
    return torch.nn.functional.pad(x, flat)

kernel_name = 'gated_mix__softmax_full_mha__dense_activation_squared_relu__prompt'

def setup_inputs():

    _w = (lambda a: (lambda t: t.to(torch.bfloat16) if t.is_floating_point() else t)(torch.as_tensor(a)))
    def _A_setup():
        B, S, D = 1, 2048, 512
        return {
            "x": _w((lambda *s: torch.randn(*s, dtype=torch.bfloat16) * 0.05)(B, S, D)),
            "wqkv": _w((lambda *s: torch.randn(*s, dtype=torch.bfloat16) * 0.8)(D, 3 * D)),
            "wo": _w((lambda *s: torch.randn(*s, dtype=torch.bfloat16) * 0.1)(D, D)),
        }
    _A_in = _A_setup()

    def _B_setup():
        B, S, D, F = 1, 2048, 512, 1792
        return {
            "x": _w((lambda *s: torch.randn(*s, dtype=torch.bfloat16) * 0.05)(B, S, D)),
            "w1": _w((lambda *s: torch.randn(*s, dtype=torch.bfloat16) * 0.1)(D, F)),
            "b1": _w((lambda *s: torch.randn(*s, dtype=torch.bfloat16) * 0.05)(F)),
            "w2": _w((lambda *s: torch.randn(*s, dtype=torch.bfloat16) * 0.05)(F, D)),
            "b2": _w((lambda *s: torch.randn(*s, dtype=torch.bfloat16) * 0.05)(D)),
        }
    _B_in = _B_setup()

    return {
        "A_x": _A_in["x"],
        "A_wqkv": _A_in["wqkv"],
        "A_wo": _A_in["wo"],
        "B_x": _B_in["x"],
        "B_w1": _B_in["w1"],
        "B_b1": _B_in["b1"],
        "B_w2": _B_in["w2"],
        "B_b2": _B_in["b2"],
        "gate_w": _w((lambda *s: torch.randn(*s, dtype=torch.bfloat16) * 0.05)(512) * 16.0),
    }

def reference(A_x, A_wqkv, A_wo, B_x, B_w1, B_b1, B_w2, B_b2, gate_w):
    def _A_ref(x, wqkv, wo):
        B, S, D = x.shape
        H = 32; Dh = D // H
        qkv = (lambda x, *d: x.permute(*d))((x @ wqkv).reshape(B, S, 3, H, Dh), 2, 0, 3, 1, 4)
        q, k, v = qkv[0], qkv[1], qkv[2]
        scale = Dh ** -0.5
        scores = torch.einsum("bhqd,bhkd->bhqk", q, k) * scale
        p = _softmax(scores, axis=-1)
        o = torch.einsum("bhqk,bhkd->bhqd", p, v)
        return (lambda x, *d: x.permute(*d))(o, 0, 2, 1, 3).reshape(B, S, D) @ wo

    def _B_ref(x, w1, b1, w2, b2):
        h = torch.einsum("bsd,df->bsf", x, w1) + b1
        zero = torch.zeros_like(h)
        r = torch.where(h > zero, h, zero)
        h = r * r
        out = torch.einsum("bsf,fd->bsd", h, w2) + b2
        return out

    x = A_x
    g = _sigmoid((x * gate_w).sum(-1, keepdims=True))
    a = _A_ref(x, A_wqkv, A_wo)
    b = _B_ref(x, B_w1, B_b1, B_w2, B_b2)
    return g * a + (1 - g) * b
```

```python
class Regs:
    def __init__(self, prefix, start, limit):
        self.prefix = prefix
        self.next = start
        self.limit = limit
        self.names = {}
        self.hi = start

    def alloc(self, n=1, align=1, name=None):
        s = (self.next + align - 1) // align * align
        if s + n > self.limit:
            raise RuntimeError(f"out of {self.prefix} registers: need {s+n} > {self.limit} ({name})")
        self.next = s + n
        self.hi = max(self.hi, self.next)
        if name:
            self.names[name] = (s, n)
        return s

    def mark(self):
        return self.next

    def release(self, mark):
        self.next = mark


def v(i, n=1):
    return f"v{i}" if n == 1 else f"v[{i}:{i+n-1}]"


def s(i, n=1):
    return f"s{i}" if n == 1 else f"s[{i}:{i+n-1}]"


def a(i, n=1):
    return f"a{i}" if n == 1 else f"a[{i}:{i+n-1}]"


class Asm:
    def __init__(self):
        self.lines = []
        self._lab = 0

    def __call__(self, text):
        for ln in text.split("\n"):
            ln = ln.strip()
            if ln:
                self.lines.append("    " + ln)

    def c(self, text):
        self.lines.append("    ; " + text)

    def label(self, name):
        self.lines.append(name + ":")

    def newlabel(self, base="L"):
        self._lab += 1
        return f"{base}_{self._lab}"

    def raw(self, text):
        self.lines.append(text)

    def text(self):
        return "\n".join(self.lines) + "\n"

    def srd(self, sd, sbase, size, off_lo=None):
        self(f"s_mov_b32 {s(sd)}, {s(sbase)}")
        self(f"s_mov_b32 {s(sd+1)}, {s(sbase+1)}")
        if isinstance(size, int):
            self(f"s_mov_b32 {s(sd+2)}, {size}")
        else:
            self(f"s_mov_b32 {s(sd+2)}, {size}")
        self(f"s_mov_b32 {s(sd+3)}, 0x00020000")

    def add64(self, sdst, ssrc, imm):
        self(f"s_add_u32 {s(sdst)}, {s(ssrc)}, {imm}")
        self(f"s_addc_u32 {s(sdst+1)}, {s(ssrc+1)}, 0")

    def nop(self, n):
        while n > 0:
            k = min(n, 16)
            self(f"s_nop {k-1}")
            n -= k


def kernel_descriptor(name, vgprs, sgprs, accum_offset=None, extra=""):
    if accum_offset is None:
        accum_offset = (vgprs + 3) // 4 * 4
    return f""".section .rodata,"a"
.p2align 6
.amdhsa_kernel {name}
  .amdhsa_next_free_vgpr {vgprs}
  .amdhsa_next_free_sgpr {sgprs}
  .amdhsa_accum_offset {accum_offset}
  .amdhsa_group_segment_fixed_size 0
  .amdhsa_kernarg_size 96
  .amdhsa_user_sgpr_count 2
  .amdhsa_user_sgpr_kernarg_segment_ptr 1
  .amdhsa_system_sgpr_workgroup_id_x 1
{extra}.end_amdhsa_kernel
.text
"""


def kernel_header(name):
    return f""".text
.globl {name}
.p2align 8
.type {name},@function
{name}:
"""
```

```python
from asmlib import *
from layout import *

LDS_K = 0
LDS_V = 65536
LDS_SCR = 131072
LDS_MRG = 131072 + 256
LDS_TOTAL = LDS_MRG + 8 * 2304


def emit_attn(A, s_idx, NW=16, max_vgpr=128):
    split = NW == 16
    NI = 32 if split else 64
    TSTR = 2048 if split else 1024
    CPI = NI // 4
    NTW = 64 // NW
    DPC = 16 // NW

    V = Regs("v", 1, max_vgpr)
    S = Regs("s", 4, 96)
    sPWS = S.alloc(2, 2)
    sPB = S.alloc(2, 2)
    srdQ = S.alloc(4, 4)
    srdK = S.alloc(4, 4)
    srdV = S.alloc(4, 4)
    srdO = S.alloc(4, 4)
    s_wave = S.alloc()
    s_head = S.alloc()
    s_qblk = S.alloc()
    s_qt = S.alloc()
    s_kh = S.alloc()
    s_hoff = S.alloc()
    sMaskV = S.alloc(2, 2)
    sT = [S.alloc() for _ in range(8)]
    sCnt = S.alloc()

    Sb = [V.alloc(16, 4), V.alloc(16, 4)]
    Cb = V.alloc(16, 4)
    Ob = V.alloc(16, 4)
    Pb = V.alloc(8, 4)
    Qf = V.alloc(4, 4)
    Kf = [V.alloc(4, 4), V.alloc(4, 4)]
    Vf = [[V.alloc(4, 4), V.alloc(4, 4)], [V.alloc(4, 4), V.alloc(4, 4)]]
    vKa = V.alloc()
    vVa = V.alloc()
    v_lane = V.alloc()
    v_hh = V.alloc()
    v_l16 = V.alloc()
    vt = [V.alloc() for _ in range(8)]

    A.c(f"==== attention role NW={NW}")
    A(f"s_load_dwordx2 {s(sPWS,2)}, s[0:1], {KA_WS}")
    A(f"v_lshrrev_b32 {v(vt[0])}, 6, v0")
    A(f"v_and_b32 {v(v_lane)}, 63, v0")
    A("s_nop 0")
    A(f"v_readfirstlane_b32 {s(s_wave)}, {v(vt[0])}")
    A(f"v_lshrrev_b32 {v(v_hh)}, 5, {v(v_lane)}")
    A(f"v_lshlrev_b32 {v(v_l16)}, 4, {v(v_lane)}")
    A(f"s_and_b32 {s(s_head)}, {s(s_idx)}, 31")
    A(f"s_lshr_b32 {s(s_qblk)}, {s(s_idx)}, 5")
    A(f"s_and_b32 {s(s_qt)}, {s(s_wave)}, 7")
    A(f"s_lshr_b32 {s(s_kh)}, {s(s_wave)}, 3")
    A(f"s_mov_b32 {s(sMaskV)}, 0x0000ffff")
    A(f"s_mov_b32 {s(sMaskV+1)}, 0x0000ffff")
    A("s_waitcnt lgkmcnt(0)")
    for srd, off in ((srdQ, WS_QP), (srdK, WS_KP), (srdV, WS_VP), (srdO, WS_O)):
        A.add64(sPB, sPWS, off)
        A.srd(srd, sPB, 0x200000)
    A(f"s_lshl_b32 {s(s_hoff)}, {s(s_head)}, 16")
    Kn = [Sb[0] + 4 * j for j in range(4)] + [Sb[1] + 4 * j for j in range(4)]
    assert NTW <= 8
    A(f"s_mul_i32 {s(sT[0])}, {s(s_wave)}, {NTW*1024}")
    A(f"s_add_u32 {s(sT[0])}, {s(sT[0])}, {s(s_hoff)}")
    for j in range(NTW):
        A(f"s_add_u32 {s(sT[1])}, {s(sT[0])}, {j*1024}")
        A(f"buffer_load_dwordx4 {v(Kn[j],4)}, {v(v_l16)}, {s(srdK,4)}, {s(sT[1])} offen")
    A(f"s_lshl_b32 {s(sT[0])}, {s(s_qblk)}, 3")
    A(f"s_add_u32 {s(sT[0])}, {s(sT[0])}, {s(s_qt)}")
    A(f"s_lshl_b32 {s(sT[0])}, {s(sT[0])}, 10")
    A(f"s_add_u32 {s(sT[0])}, {s(sT[0])}, {s(s_hoff)}")
    A(f"buffer_load_dwordx4 {v(Qf,4)}, {v(v_l16)}, {s(srdQ,4)}, {s(sT[0])} offen")
    A(f"s_mul_i32 {s(sT[2])}, {s(s_wave)}, {DPC*1024}")
    A(f"s_add_u32 {s(sT[3])}, {s(sT[2])}, {s(s_hoff)}")
    for c in range(4):
        for u in range(DPC):
            o = c * 16384 + u * 1024
            A(f"s_add_u32 m0, {s(sT[2])}, {LDS_K + o}")
            A(f"s_add_u32 {s(sT[4])}, {s(sT[3])}, {o}")
            A(f"buffer_load_dwordx4 {v(v_l16)}, {s(srdK,4)}, {s(sT[4])} offen lds")
        for u in range(DPC):
            o = c * 16384 + u * 1024
            A(f"s_add_u32 m0, {s(sT[2])}, {LDS_V + o}")
            A(f"s_add_u32 {s(sT[4])}, {s(sT[3])}, {o}")
            A(f"buffer_load_dwordx4 {v(v_l16)}, {s(srdV,4)}, {s(sT[4])} offen lds")
    ndma = 8 * DPC
    A(f"s_lshl_b32 {s(sT[0])}, {s(s_kh)}, 10" if split else f"s_mov_b32 {s(sT[0])}, 0")
    A(f"v_add_u32 {v(vKa)}, {s(sT[0])}, {v(v_l16)}")
    A(f"v_and_b32 {v(vt[0])}, 15, {v(v_lane)}")
    A(f"v_lshlrev_b32 {v(vt[1])}, 4, {v(v_hh)}")
    A(f"v_add_u32 {v(vt[0])}, {v(vt[0])}, {v(vt[1])}")
    A(f"v_lshlrev_b32 {v(vt[0])}, 4, {v(vt[0])}")
    A(f"s_add_u32 {s(sT[0])}, {s(sT[0])}, {LDS_V}")
    A(f"v_add_u32 {v(vVa)}, {s(sT[0])}, {v(vt[0])}")
    A(f"v_and_b32 {v(vt[0])}, 31, {v(v_lane)}")
    A(f"v_cmp_eq_u32 vcc, 16, {v(vt[0])}")
    A(f"v_mov_b32 {v(vt[1])}, 0x3f803f80")
    A("s_nop 1")
    A(f"v_cndmask_b32 {v(vt[2])}, 0, {v(vt[1])}, vcc")
    for bsel in range(2):
        for m in range(2):
            for r in range(4):
                A(f"v_mov_b32 {v(Vf[bsel][m]+r)}, {v(vt[2])}")
    for r in range(16):
        A(f"v_mov_b32 {v(Ob+r)}, 0")

    def sq_sum(dst, src4):
        A(f"v_mov_b32 {v(dst)}, 0")
        for p in range(4):
            A(f"v_lshlrev_b32 {v(vt[6])}, 16, {v(src4+p)}")
            A(f"v_and_b32 {v(vt[7])}, 0xffff0000, {v(src4+p)}")
            A(f"v_fma_f32 {v(dst)}, {v(vt[6])}, {v(vt[6])}, {v(dst)}")
            A(f"v_fma_f32 {v(dst)}, {v(vt[7])}, {v(vt[7])}, {v(dst)}")

    def half_sum(x, t):
        A(f"v_mov_b32 {v(t)}, {v(x)}")
        A("s_nop 1")
        A(f"v_permlane32_swap_b32 {v(t)}, {v(x)}")
        A("s_nop 1")
        A(f"v_add_f32 {v(x)}, {v(x)}, {v(t)}")

    A(f"s_waitcnt vmcnt({ndma})")
    for j in range(NTW):
        sq_sum(vt[0], Kn[j])
        half_sum(vt[0], vt[1])
        if j == 0:
            A(f"v_mov_b32 {v(vt[2])}, {v(vt[0])}")
        else:
            A(f"v_max_f32 {v(vt[2])}, {v(vt[2])}, {v(vt[0])}")
    sq_sum(vt[3], Qf)
    half_sum(vt[3], vt[1])
    A("s_nop 1")
    A(f"v_max_f32_dpp {v(vt[0])}, {v(vt[2])}, {v(vt[2])} quad_perm:[1,0,3,2] row_mask:0xf bank_mask:0xf")
    A("s_nop 1")
    A(f"v_max_f32_dpp {v(vt[1])}, {v(vt[0])}, {v(vt[0])} quad_perm:[2,3,0,1] row_mask:0xf bank_mask:0xf")
    A("s_nop 1")
    A(f"v_max_f32_dpp {v(vt[0])}, {v(vt[1])}, {v(vt[1])} row_half_mirror row_mask:0xf bank_mask:0xf")
    A("s_nop 1")
    A(f"v_max_f32_dpp {v(vt[1])}, {v(vt[0])}, {v(vt[0])} row_mirror row_mask:0xf bank_mask:0xf")
    A("s_nop 1")
    A(f"v_readlane_b32 {s(sT[0])}, {v(vt[1])}, 0")
    A(f"v_readlane_b32 {s(sT[1])}, {v(vt[1])}, 16")
    A(f"v_readlane_b32 {s(sT[2])}, {v(vt[1])}, 32")
    A(f"v_readlane_b32 {s(sT[3])}, {v(vt[1])}, 48")
    A("s_nop 3")
    A(f"s_max_u32 {s(sT[0])}, {s(sT[0])}, {s(sT[1])}")
    A(f"s_max_u32 {s(sT[2])}, {s(sT[2])}, {s(sT[3])}")
    A(f"s_max_u32 {s(sT[0])}, {s(sT[0])}, {s(sT[2])}")
    A(f"v_mov_b32 {v(vt[0])}, {s(sT[0])}")
    A(f"s_lshl_b32 {s(sT[1])}, {s(s_wave)}, 2")
    A(f"s_add_u32 {s(sT[1])}, {s(sT[1])}, {LDS_SCR}")
    A(f"v_mov_b32 {v(vt[1])}, {s(sT[1])}")
    A(f"ds_write_b32 {v(vt[1])}, {v(vt[0])}")
    A(f"s_waitcnt vmcnt({ndma - 2*DPC}) lgkmcnt(0)")
    A("s_barrier")
    A(f"v_mov_b32 {v(vt[1])}, {LDS_SCR}")
    for q in range(NW // 4):
        A(f"ds_read_b128 {v(Sb[0]+4*q,4)}, {v(vt[1])} offset:{16*q}")
    A(f"ds_read_b128 {v(Kf[0],4)}, {v(vKa)}")
    A(f"ds_read_b128 {v(Kf[1],4)}, {v(vKa)} offset:{TSTR}")
    A(f"s_mov_b64 exec, {s(sMaskV,2)}")
    A(f"ds_read_b128 {v(Vf[0][0],4)}, {v(vVa)}")
    A(f"ds_read_b128 {v(Vf[0][1],4)}, {v(vVa)} offset:512")
    A("s_mov_b64 exec, -1")
    A(f"s_waitcnt lgkmcnt(4)")
    A(f"v_max_f32 {v(vt[2])}, {v(Sb[0])}, {v(Sb[0]+1)}")
    for q in range(2, NW):
        A(f"v_max_f32 {v(vt[2])}, {v(vt[2])}, {v(Sb[0]+q)}")
    A(f"v_mul_f32 {v(vt[2])}, {v(vt[2])}, {v(vt[3])}")
    A(f"v_sqrt_f32 {v(vt[2])}, {v(vt[2])}")
    A("s_nop 0")
    A(f"v_mul_f32 {v(vt[2])}, 0x3f808000, {v(vt[2])}")
    A(f"v_add_f32 {v(vt[2])}, 0x35800000, {v(vt[2])}")
    for r in range(16):
        A(f"v_sub_f32 {v(Cb+r)}, 0, {v(vt[2])}")
    A("s_waitcnt lgkmcnt(2)")
    A("s_nop 1")
    A(f"v_mfma_f32_32x32x16_bf16 {v(Sb[0],16)}, {v(Kf[0],4)}, {v(Qf,4)}, {v(Cb,16)}")

    for i in range(NI):
        A.c(f"-- tile {i}")
        cur, nxt = i & 1, (i + 1) & 1
        if (i + 2) % CPI == 0 and (i + 2) // CPI < 4:
            c = (i + 2) // CPI
            A(f"s_waitcnt vmcnt({ndma - 2*DPC*(c+1)})")
            A("s_barrier")
        A("s_waitcnt lgkmcnt(0)")
        if i + 1 < NI:
            A(f"v_mfma_f32_32x32x16_bf16 {v(Sb[nxt],16)}, {v(Kf[nxt],4)}, {v(Qf,4)}, {v(Cb,16)}")
        if i + 2 < NI:
            A(f"ds_read_b128 {v(Kf[cur],4)}, {v(vKa)} offset:{(i+2)*TSTR}")
        if i + 1 < NI:
            A(f"s_mov_b64 exec, {s(sMaskV,2)}")
            A(f"ds_read_b128 {v(Vf[nxt][0],4)}, {v(vVa)} offset:{(i+1)*TSTR}")
            A(f"ds_read_b128 {v(Vf[nxt][1],4)}, {v(vVa)} offset:{(i+1)*TSTR+512}")
            A("s_mov_b64 exec, -1")
        for r in range(16):
            A(f"v_exp_f32 {v(Sb[cur]+r)}, {v(Sb[cur]+r)}")
        for p in range(8):
            A(f"v_cvt_pk_bf16_f32 {v(Pb+p)}, {v(Sb[cur]+2*p)}, {v(Sb[cur]+2*p+1)}")
        A(f"v_mfma_f32_32x32x16_bf16 {v(Ob,16)}, {v(Vf[cur][0],4)}, {v(Pb,4)}, {v(Ob,16)}")
        A("s_nop 0")
        A(f"v_mfma_f32_32x32x16_bf16 {v(Ob,16)}, {v(Vf[cur][1],4)}, {v(Pb+4,4)}, {v(Ob,16)}")
    A.nop(16)

    lab_norm = A.newlabel("Lnorm")
    if split:
        lab_lo = A.newlabel("Lkh0")
        A(f"s_mul_i32 {s(sT[0])}, {s(s_qt)}, 2304")
        A(f"s_add_u32 {s(sT[0])}, {s(sT[0])}, {LDS_MRG}")
        A(f"v_lshlrev_b32 {v(vt[0])}, 2, {v(v_lane)}")
        A(f"v_add_u32 {v(vt[0])}, {s(sT[0])}, {v(vt[0])}")
        A(f"s_cmp_eq_u32 {s(s_kh)}, 0")
        A(f"s_cbranch_scc1 {lab_lo}")
        for r in range(9):
            A(f"ds_write_b32 {v(vt[0])}, {v(Ob+r)} offset:{256*r}")
        A("s_waitcnt lgkmcnt(0)")
        A("s_barrier")
        A("s_endpgm")
        A.label(lab_lo)
        A("s_barrier")
        for r in range(9):
            A(f"ds_read_b32 {v(Sb[0]+r)}, {v(vt[0])} offset:{256*r}")
        A("s_waitcnt lgkmcnt(0)")
        for r in range(9):
            A(f"v_add_f32 {v(Ob+r)}, {v(Ob+r)}, {v(Sb[0]+r)}")
    A(f"v_mov_b32 {v(vt[1])}, {v(Ob+8)}")
    A("s_nop 1")
    A(f"v_permlane32_swap_b32 {v(vt[1])}, {v(Ob+8)}")
    A("s_nop 1")
    A(f"v_cmp_nle_f32 vcc, 0x12800000, {v(vt[1])}")
    A(f"s_cbranch_vccz {lab_norm}")
    A.c("---- fallback: running-max online softmax")
    vM = vt[2]
    A(f"v_mov_b32 {v(vM)}, 0xff7fffff")
    for r in range(16):
        A(f"v_mov_b32 {v(Ob+r)}, 0")
    A(f"v_mov_b32 {v(vt[3])}, {v(v_l16)}")
    A(f"v_and_b32 {v(vt[4])}, 15, {v(v_lane)}")
    A(f"v_lshlrev_b32 {v(vt[5])}, 4, {v(v_hh)}")
    A(f"v_add_u32 {v(vt[4])}, {v(vt[4])}, {v(vt[5])}")
    A(f"v_lshlrev_b32 {v(vt[4])}, 4, {v(vt[4])}")
    A(f"v_add_u32 {v(vt[4])}, {LDS_V}, {v(vt[4])}")
    A(f"s_mov_b32 {s(sCnt)}, 0")
    lab_fb = A.newlabel("Lfb")
    A.label(lab_fb)
    A(f"ds_read_b128 {v(Kf[0],4)}, {v(vt[3])}")
    A(f"s_mov_b64 exec, {s(sMaskV,2)}")
    A(f"ds_read_b128 {v(Vf[0][0],4)}, {v(vt[4])}")
    A(f"ds_read_b128 {v(Vf[0][1],4)}, {v(vt[4])} offset:512")
    A("s_mov_b64 exec, -1")
    A("s_waitcnt lgkmcnt(0)")
    A("s_nop 1")
    A(f"v_mfma_f32_32x32x16_bf16 {v(Sb[0],16)}, {v(Kf[0],4)}, {v(Qf,4)}, 0")
    A.nop(16)
    A(f"v_max3_f32 {v(vt[0])}, {v(Sb[0])}, {v(Sb[0]+1)}, {v(Sb[0]+2)}")
    for r in range(3, 15, 2):
        A(f"v_max3_f32 {v(vt[0])}, {v(vt[0])}, {v(Sb[0]+r)}, {v(Sb[0]+r+1)}")
    A(f"v_max_f32 {v(vt[0])}, {v(vt[0])}, {v(Sb[0]+15)}")
    A(f"v_mov_b32 {v(vt[1])}, {v(vt[0])}")
    A("s_nop 1")
    A(f"v_permlane32_swap_b32 {v(vt[1])}, {v(vt[0])}")
    A("s_nop 1")
    A(f"v_max3_f32 {v(vt[0])}, {v(vt[0])}, {v(vt[1])}, {v(vM)}")
    A(f"v_sub_f32 {v(vt[1])}, {v(vM)}, {v(vt[0])}")
    A(f"v_exp_f32 {v(vt[1])}, {v(vt[1])}")
    A(f"v_mov_b32 {v(vM)}, {v(vt[0])}")
    for r in range(9):
        A(f"v_mul_f32 {v(Ob+r)}, {v(Ob+r)}, {v(vt[1])}")
    for r in range(16):
        A(f"v_sub_f32 {v(Sb[0]+r)}, {v(Sb[0]+r)}, {v(vM)}")
        A(f"v_exp_f32 {v(Sb[0]+r)}, {v(Sb[0]+r)}")
    A("s_nop 0")
    for p in range(8):
        A(f"v_cvt_pk_bf16_f32 {v(Pb+p)}, {v(Sb[0]+2*p)}, {v(Sb[0]+2*p+1)}")
    A("s_nop 1")
    A(f"v_mfma_f32_32x32x16_bf16 {v(Ob,16)}, {v(Vf[0][0],4)}, {v(Pb,4)}, {v(Ob,16)}")
    A(f"v_mfma_f32_32x32x16_bf16 {v(Ob,16)}, {v(Vf[0][1],4)}, {v(Pb+4,4)}, {v(Ob,16)}")
    A.nop(16)
    A(f"v_add_u32 {v(vt[3])}, 1024, {v(vt[3])}")
    A(f"v_add_u32 {v(vt[4])}, 1024, {v(vt[4])}")
    A(f"s_add_u32 {s(sCnt)}, {s(sCnt)}, 1")
    A(f"s_cmp_lt_u32 {s(sCnt)}, 64")
    A(f"s_cbranch_scc1 {lab_fb}")
    A(f"v_mov_b32 {v(vt[1])}, {v(Ob+8)}")
    A("s_nop 1")
    A(f"v_permlane32_swap_b32 {v(vt[1])}, {v(Ob+8)}")
    A("s_nop 1")
    A.label(lab_norm)
    A(f"v_rcp_f32 {v(vt[2])}, {v(vt[1])}")
    A("s_nop 0")
    for r in range(8):
        A(f"v_mul_f32 {v(Ob+r)}, {v(Ob+r)}, {v(vt[2])}")
    for p in range(4):
        A(f"v_cvt_pk_bf16_f32 {v(Pb+p)}, {v(Ob+2*p)}, {v(Ob+2*p+1)}")
    A(f"v_and_b32 {v(vt[0])}, 31, {v(v_lane)}")
    A(f"v_lshlrev_b32 {v(vt[0])}, 10, {v(vt[0])}")
    A(f"v_lshlrev_b32 {v(vt[3])}, 4, {v(v_hh)}")
    A(f"v_add_u32 {v(vt[0])}, {v(vt[0])}, {v(vt[3])}")
    A(f"s_lshl_b32 {s(sT[0])}, {s(s_qblk)}, 3")
    A(f"s_add_u32 {s(sT[0])}, {s(sT[0])}, {s(s_qt)}")
    A(f"s_lshl_b32 {s(sT[0])}, {s(sT[0])}, 15")
    A(f"s_lshl_b32 {s(sT[1])}, {s(s_head)}, 5")
    A(f"s_add_u32 {s(sT[0])}, {s(sT[0])}, {s(sT[1])}")
    A(f"buffer_store_dwordx4 {v(Pb,4)}, {v(vt[0])}, {s(srdO,4)}, {s(sT[0])} offen")
    A("s_endpgm")
    return V.hi, S.hi
```

```python
from asmlib import *
from layout import *


def emit_gate(A, s_idx, max_vgpr=128):
    V = Regs("v", 1, max_vgpr)
    S = Regs("s", 4, 96)
    sPX = S.alloc(2, 2)
    sPG = S.alloc(2, 2)
    sPWS = S.alloc(2, 2)
    srdX = S.alloc(4, 4)
    srdG = S.alloc(4, 4)
    srdD = S.alloc(4, 4)
    s_wave = S.alloc()
    s_tok = S.alloc()
    sT = [S.alloc() for _ in range(6)]
    sExec = S.alloc(2, 2)
    v_lane = V.alloc()
    v_off = V.alloc()
    vG = V.alloc(4, 4)
    vGf = V.alloc(8, 4)
    vX = [V.alloc(4, 4) for _ in range(8)]
    vacc = [V.alloc() for _ in range(8)]
    vt = [V.alloc() for _ in range(8)]
    A.c("==== gate role")
    A(f"s_load_dwordx2 {s(sPX,2)}, s[0:1], {KA_X}")
    A(f"s_load_dwordx2 {s(sPG,2)}, s[0:1], {KA_GW}")
    A(f"s_load_dwordx2 {s(sPWS,2)}, s[0:1], {KA_WS}")
    A(f"v_lshrrev_b32 {v(vt[0])}, 6, v0")
    A(f"v_and_b32 {v(v_lane)}, 63, v0")
    A(f"v_lshlrev_b32 {v(v_off)}, 4, {v(v_lane)}")
    A(f"v_readfirstlane_b32 {s(s_wave)}, {v(vt[0])}")
    A("s_waitcnt lgkmcnt(0)")
    A.srd(srdX, sPX, SZ_X)
    A.srd(srdG, sPG, SZ_GW)
    A.add64(sT[0], sPWS, WS_G)
    A.srd(srdD, sT[0], S_TOK * 4)
    A(f"s_lshl_b32 {s(s_tok)}, {s(s_idx)}, 6")
    A(f"s_lshl_b32 {s(sT[0])}, {s(s_wave)}, 3")
    A(f"s_add_u32 {s(s_tok)}, {s(s_tok)}, {s(sT[0])}")
    A(f"s_lshl_b32 {s(sT[1])}, {s(s_tok)}, 10")
    A(f"buffer_load_dwordx4 {v(vG,4)}, {v(v_off)}, {s(srdG,4)}, 0 offen")
    for j in range(8):
        A(f"s_add_u32 {s(sT[2])}, {s(sT[1])}, {j*1024}")
        A(f"buffer_load_dwordx4 {v(vX[j],4)}, {v(v_off)}, {s(srdX,4)}, {s(sT[2])} offen")
    A("s_waitcnt vmcnt(8)")
    for p in range(4):
        A(f"v_lshlrev_b32 {v(vGf+2*p)}, 16, {v(vG+p)}")
        A(f"v_and_b32 {v(vGf+2*p+1)}, 0xffff0000, {v(vG+p)}")
    A("s_waitcnt vmcnt(0)")
    for j in range(8):
        A(f"v_mov_b32 {v(vacc[j])}, 0")
        for p in range(4):
            A(f"v_lshlrev_b32 {v(vt[0])}, 16, {v(vX[j]+p)}")
            A(f"v_and_b32 {v(vt[1])}, 0xffff0000, {v(vX[j]+p)}")
            A(f"v_mul_f32 {v(vt[0])}, {v(vt[0])}, {v(vGf+2*p)}")
            A(f"v_mul_f32 {v(vt[1])}, {v(vt[1])}, {v(vGf+2*p+1)}")
            A(f"v_cvt_pk_bf16_f32 {v(vt[2])}, {v(vt[0])}, {v(vt[1])}")
            A(f"v_lshlrev_b32 {v(vt[0])}, 16, {v(vt[2])}")
            A(f"v_and_b32 {v(vt[1])}, 0xffff0000, {v(vt[2])}")
            A(f"v_add_f32 {v(vacc[j])}, {v(vacc[j])}, {v(vt[0])}")
            A(f"v_add_f32 {v(vacc[j])}, {v(vacc[j])}, {v(vt[1])}")
    A(f"s_mov_b64 {s(sExec,2)}, exec")
    for j in range(8):
        r = vacc[j]
        A("s_nop 1")
        A(f"v_add_f32_dpp {v(vt[0])}, {v(r)}, {v(r)} quad_perm:[1,0,3,2] row_mask:0xf bank_mask:0xf")
        A("s_nop 1")
        A(f"v_add_f32_dpp {v(vt[1])}, {v(vt[0])}, {v(vt[0])} quad_perm:[2,3,0,1] row_mask:0xf bank_mask:0xf")
        A("s_nop 1")
        A(f"v_add_f32_dpp {v(vt[0])}, {v(vt[1])}, {v(vt[1])} row_half_mirror row_mask:0xf bank_mask:0xf")
        A("s_nop 1")
        A(f"v_add_f32_dpp {v(vt[1])}, {v(vt[0])}, {v(vt[0])} row_mirror row_mask:0xf bank_mask:0xf")
        A("s_nop 1")
        for q in range(4):
            A(f"v_readlane_b32 {s(sT[q])}, {v(vt[1])}, {16*q}")
        A("s_nop 3")
        A(f"v_mov_b32 {v(vt[2])}, {s(sT[0])}")
        A(f"v_add_f32 {v(vt[2])}, {s(sT[1])}, {v(vt[2])}")
        A(f"v_add_f32 {v(vt[2])}, {s(sT[2])}, {v(vt[2])}")
        A(f"v_add_f32 {v(vt[2])}, {s(sT[3])}, {v(vt[2])}")
        A(f"v_cvt_pk_bf16_f32 {v(vt[3])}, {v(vt[2])}, {v(vt[2])}")
        A(f"v_lshlrev_b32 {v(vt[3])}, 16, {v(vt[3])}")
        A(f"v_mul_f32 {v(vt[3])}, 0xbfb8aa3b, {v(vt[3])}")
        A(f"v_exp_f32 {v(vt[4])}, {v(vt[3])}")
        A("s_nop 0")
        A(f"v_add_f32 {v(vt[4])}, 1.0, {v(vt[4])}")
        A(f"v_rcp_f32 {v(vt[5])}, {v(vt[4])}")
        A("s_nop 0")
        A(f"v_cvt_pk_bf16_f32 {v(vt[6])}, {v(vt[5])}, {v(vt[5])}")
        A(f"v_lshlrev_b32 {v(vt[6])}, 16, {v(vt[6])}")
        A(f"s_lshl_b32 {s(sT[4])}, {s(s_tok)}, 2")
        A(f"s_add_u32 {s(sT[4])}, {s(sT[4])}, {4*j}")
        A(f"v_mov_b32 {v(vt[7])}, 0")
        A("s_mov_b64 exec, 1")
        A(f"buffer_store_dword {v(vt[6])}, {v(vt[7])}, {s(srdD,4)}, {s(sT[4])} offen")
        A(f"s_mov_b64 exec, {s(sExec,2)}")
    A("s_endpgm")
    return V.hi, S.hi
```

```python
import struct
from asmlib import *
from layout import *

NST = 3
BK = 64


def f32bits(x):
    return struct.unpack("<I", struct.pack("<f", x))[0]


class Cfg:
    def __init__(self, **kw):
        self.__dict__.update(kw)


def w_const(mode, t, a2):
    if mode == "id":
        return 16 * t + 4 * a2
    if mode == "operm":
        return 16 * t + 8 * a2
    if mode == "hperm":
        return 32 * (t >> 1) + 4 * (t & 1) + 8 * a2
    raise ValueError(mode)


def w_hhcoef(mode):
    return {"id": 8, "operm": 4, "hperm": 16}[mode]


def emit_gemm(A, cfg, s_idx):
    WM, WN, WK, TM, TN = cfg.WM, cfg.WN, cfg.WK, cfg.TM, cfg.TN
    BM, BN = WM * TM * 32, WN * TN * 32
    RSW = BN * 2
    XB = BM * 128
    WB = 64 * RSW
    SST = XB + WB
    nX, nW = BM // 64, BN // 64
    assert BM % 64 == 0 and BN % 64 == 0 and RSW in (128, 256)
    assert WM * WN * WK == 8
    KS = cfg.K // BK
    NT = 4 // WK
    mode = cfg.wperm
    nlds = TM + 2 * TN
    ndma = nX + nW

    V = Regs("v", 1, cfg.max_vgpr)
    S = Regs("s", 4, 96)

    sPX = S.alloc(2, 2)
    sPW = S.alloc(2, 2)
    sPWS = S.alloc(2, 2)
    sPB = S.alloc(2, 2)
    srdX = S.alloc(4, 4)
    srdW = S.alloc(4, 4)
    srdD = S.alloc(4, 4)
    srdB = S.alloc(4, 4)
    s_wave = S.alloc()
    s_wm = S.alloc()
    s_wn = S.alloc()
    s_wk = S.alloc()
    s_mblk = S.alloc()
    s_nblk = S.alloc()
    sXo = [S.alloc() for _ in range(nX)]
    sWo = [S.alloc() for _ in range(nW)]
    sXl = S.alloc()
    sWl = S.alloc()
    sT = [S.alloc() for _ in range(6)]
    cfg.sregs = dict(sPWS=sPWS, srdD=srdD, srdB=srdB, s_wave=s_wave, s_wm=s_wm, s_wn=s_wn, s_wk=s_wk,
                     s_mblk=s_mblk, s_nblk=s_nblk, sT=sT, sPB=sPB)

    acc = [[V.alloc(16, 4) for b in range(TM)] for a_ in range(TN)]
    Xf = [[V.alloc(4, 4) for b in range(TM)] for p in range(2)]
    Wf = [[V.alloc(4, 4) for a_ in range(TN)] for p in range(2)]
    vXa = [V.alloc() for _ in range(NT)]
    vWa = [V.alloc() for _ in range(TN)]
    vXd = [V.alloc() for _ in range(nX)]
    vWd = V.alloc()
    v_lane = V.alloc()
    v_hh = V.alloc()
    v_tl = V.alloc()
    vt = [V.alloc() for _ in range(6)]
    cfg.vregs = dict(acc=acc, v_lane=v_lane, v_hh=v_hh, v_tl=v_tl, vt=vt, Xf=Xf, Wf=Wf)
    cfg.V, cfg.S = V, S

    A.c(f"==== GEMM role {cfg.name}: BM={BM} BN={BN} WM={WM} WN={WN} WK={WK} K={cfg.K} orient={cfg.orient}")
    if cfg.x_src[0] == "karg":
        A(f"s_load_dwordx2 {s(sPX,2)}, s[0:1], {cfg.x_src[1]}")
    A(f"s_load_dwordx2 {s(sPW,2)}, s[0:1], {cfg.w_karg}")
    A(f"s_load_dwordx2 {s(sPWS,2)}, s[0:1], {KA_WS}")
    if cfg.bias_karg is not None:
        A(f"s_load_dwordx2 {s(sPB,2)}, s[0:1], {cfg.bias_karg}")
    A(f"v_lshrrev_b32 {v(vt[0])}, 6, v0")
    A(f"v_and_b32 {v(v_lane)}, 63, v0")
    A("s_nop 0")
    A(f"v_readfirstlane_b32 {s(s_wave)}, {v(vt[0])}")
    A(f"v_lshrrev_b32 {v(v_hh)}, 5, {v(v_lane)}")
    A(f"v_and_b32 {v(v_tl)}, 31, {v(v_lane)}")
    A(f"s_and_b32 {s(s_mblk)}, {s(s_idx)}, {cfg.nmblk-1}")
    A(f"s_lshr_b32 {s(s_nblk)}, {s(s_idx)}, {cfg.nmblk.bit_length()-1}")
    A(f"s_and_b32 {s(s_wk)}, {s(s_wave)}, {WK-1}")
    A(f"s_lshr_b32 {s(sT[0])}, {s(s_wave)}, {WK.bit_length()-1}")
    A(f"s_and_b32 {s(s_wm)}, {s(sT[0])}, {WM-1}")
    A(f"s_lshr_b32 {s(s_wn)}, {s(sT[0])}, {WM.bit_length()-1}")
    A("s_waitcnt lgkmcnt(0)")
    if cfg.x_src[0] == "karg":
        A.srd(srdX, sPX, cfg.x_size)
    else:
        A.add64(sPX, sPWS, cfg.x_src[1])
        A.srd(srdX, sPX, cfg.x_size)
    A(f"s_mul_i32 {s(sT[0])}, {s(s_nblk)}, {BN*2}")
    A(f"s_add_u32 {s(sT[0])}, {s(sT[0])}, {cfg.w_col0*2}")
    A(f"s_add_u32 {s(sPW)}, {s(sPW)}, {s(sT[0])}")
    A(f"s_addc_u32 {s(sPW+1)}, {s(sPW+1)}, 0")
    A(f"s_sub_u32 {s(sT[1])}, {cfg.w_size}, {s(sT[0])}")
    A(f"s_mov_b32 {s(srdW)}, {s(sPW)}")
    A(f"s_mov_b32 {s(srdW+1)}, {s(sPW+1)}")
    A(f"s_mov_b32 {s(srdW+2)}, {s(sT[1])}")
    A(f"s_mov_b32 {s(srdW+3)}, 0x00020000")
    A.add64(sT[0], sPWS, cfg.d_off) if cfg.d_off is not None else None
    if cfg.d_off is not None:
        A.srd(srdD, sT[0], cfg.d_size)
    else:
        A(f"s_load_dwordx2 {s(sT[0],2)}, s[0:1], {KA_OUT}")
        A("s_waitcnt lgkmcnt(0)")
        A.srd(srdD, sT[0], cfg.d_size)
    if cfg.bias_karg is not None:
        A.srd(srdB, sPB, cfg.bias_size)

    XS, WS_ = cfg.x_stride, cfg.w_stride
    A(f"v_lshrrev_b32 {v(vt[0])}, 3, {v(v_lane)}")
    A(f"v_and_b32 {v(vt[1])}, 7, {v(v_lane)}")
    A(f"s_mul_i32 {s(sT[0])}, {s(s_wave)}, {8*nX}")
    A(f"s_mov_b32 {s(sT[1])}, {XS}")
    for u in range(nX):
        A(f"v_add_u32 {v(vt[2])}, {s(sT[0])}, {v(vt[0])}")
        if u:
            A(f"v_add_u32 {v(vt[2])}, {8*u}, {v(vt[2])}")
        A(f"v_lshrrev_b32 {v(vt[2])}, 1, {v(vt[2])}")
        A(f"v_and_b32 {v(vt[2])}, 7, {v(vt[2])}")
        A(f"v_xor_b32 {v(vt[2])}, {v(vt[2])}, {v(vt[1])}")
        A(f"v_lshlrev_b32 {v(vt[2])}, 4, {v(vt[2])}")
        A(f"v_mul_lo_u32 {v(vt[3])}, {v(vt[0])}, {s(sT[1])}")
        A(f"v_add_u32 {v(vXd[u])}, {v(vt[2])}, {v(vt[3])}")
    A(f"s_mul_i32 {s(sT[2])}, {s(s_mblk)}, {BM}")
    A(f"s_add_u32 {s(sT[2])}, {s(sT[2])}, {s(sT[0])}")
    for u in range(nX):
        A(f"s_add_u32 {s(sT[3])}, {s(sT[2])}, {8*u}")
        A(f"s_mul_i32 {s(sXo[u])}, {s(sT[3])}, {XS}")
        if cfg.x_col0:
            A(f"s_add_u32 {s(sXo[u])}, {s(sXo[u])}, {cfg.x_col0*2}")
    A(f"s_mul_i32 {s(sXl)}, {s(s_wave)}, {nX*1024}")
    SPR = RSW // 16
    RPI = 1024 // RSW
    sh = SPR.bit_length() - 1
    A(f"v_lshrrev_b32 {v(vt[0])}, {sh}, {v(v_lane)}")
    A(f"v_and_b32 {v(vt[1])}, {SPR-1}, {v(v_lane)}")
    if RSW == 256:
        A(f"v_and_b32 {v(vt[2])}, 3, {v(vt[0])}")
        A(f"v_lshlrev_b32 {v(vt[2])}, 2, {v(vt[2])}")
    else:
        A(f"v_lshrrev_b32 {v(vt[2])}, 1, {v(vt[0])}")
        A(f"v_and_b32 {v(vt[2])}, 1, {v(vt[2])}")
        A(f"v_lshlrev_b32 {v(vt[2])}, 2, {v(vt[2])}")
    A(f"v_xor_b32 {v(vt[1])}, {v(vt[1])}, {v(vt[2])}")
    A(f"v_lshlrev_b32 {v(vt[1])}, 4, {v(vt[1])}")
    A(f"s_mov_b32 {s(sT[1])}, {WS_}")
    A(f"v_mul_lo_u32 {v(vt[3])}, {v(vt[0])}, {s(sT[1])}")
    A(f"v_add_u32 {v(vWd)}, {v(vt[1])}, {v(vt[3])}")
    for u in range(nW):
        A(f"s_mul_i32 {s(sT[2])}, {s(s_wave)}, {nW*RPI}")
        A(f"s_add_u32 {s(sT[2])}, {s(sT[2])}, {u*RPI}")
        A(f"s_mul_i32 {s(sWo[u])}, {s(sT[2])}, {WS_}")
    A(f"s_mul_i32 {s(sWl)}, {s(s_wave)}, {nW*1024}")
    A(f"s_add_u32 {s(sWl)}, {s(sWl)}, {XB}")

    def dma_stage(st):
        for u in range(nX):
            A(f"s_add_u32 m0, {s(sXl)}, {st*SST + u*1024}")
            A(f"s_nop 0")
            A(f"buffer_load_dwordx4 {v(vXd[u])}, {s(srdX,4)}, {s(sXo[u])} offen lds")
            A(f"s_add_u32 {s(sXo[u])}, {s(sXo[u])}, 128")
        for u in range(nW):
            A(f"s_add_u32 m0, {s(sWl)}, {st*SST + u*1024}")
            A(f"s_nop 0")
            A(f"buffer_load_dwordx4 {v(vWd)}, {s(srdW,4)}, {s(sWo[u])} offen lds")
            A(f"s_add_u32 {s(sWo[u])}, {s(sWo[u])}, {64*WS_}")

    nbias_loads = 0
    if cfg.bias_karg is not None:
        A(f"v_lshlrev_b32 {v(vt[4])}, 3, {v(v_hh)}")
        A(f"s_mul_i32 {s(sT[4])}, {s(s_nblk)}, {BN*2}")
        A(f"s_mul_i32 {s(sT[5])}, {s(s_wn)}, {TN*64}")
        A(f"s_add_u32 {s(sT[4])}, {s(sT[4])}, {s(sT[5])}")
        btmp = [Xf[0][0], Xf[1][0]] if TM >= 1 else None
        for a_ in range(TN):
            for i in range(4):
                reg = (Wf[0][a_] + 2 * i) if i < 2 else (Wf[1][a_] + 2 * (i - 2))
                A(f"buffer_load_dwordx2 {v(reg,2)}, {v(vt[4])}, {s(srdB,4)}, {s(sT[4])} offen offset:{(32*a_+8*i)*2}")
                nbias_loads += 1
    dma_stage(0)
    if KS > 1:
        dma_stage(1)

    A(f"s_mul_i32 {s(sT[0])}, {s(s_wm)}, {TM*32*128}")
    A(f"v_lshlrev_b32 {v(vt[0])}, 7, {v(v_tl)}")
    A(f"v_add_u32 {v(vt[0])}, {s(sT[0])}, {v(vt[0])}")
    A(f"v_lshrrev_b32 {v(vt[1])}, 1, {v(v_tl)}")
    A(f"v_and_b32 {v(vt[1])}, 7, {v(vt[1])}")
    A(f"s_lshl_b32 {s(sT[1])}, {s(s_wk)}, 1")
    A(f"v_add_u32 {v(vt[2])}, {s(sT[1])}, {v(v_hh)}")
    for tt in range(NT):
        A(f"v_add_u32 {v(vt[3])}, {2*WK*tt}, {v(vt[2])}")
        A(f"v_xor_b32 {v(vt[3])}, {v(vt[3])}, {v(vt[1])}")
        A(f"v_lshlrev_b32 {v(vt[3])}, 4, {v(vt[3])}")
        A(f"v_add_u32 {v(vXa[tt])}, {v(vt[0])}, {v(vt[3])}")
    A(f"v_and_b32 {v(vt[0])}, 15, {v(v_lane)}")
    A(f"v_lshrrev_b32 {v(vt[0])}, 2, {v(vt[0])}")
    A(f"v_mul_u32_u24 {v(vt[1])}, {w_hhcoef(mode)}, {v(v_hh)}")
    A(f"v_add_u32 {v(vt[1])}, {v(vt[1])}, {v(vt[0])}")
    if WK > 1:
        for tt in range(NT):
            for wk in range(WK):
                for a2 in range(2):
                    assert w_const(mode, WK * tt + wk, a2) == w_const(mode, WK * tt, a2) + w_const(mode, wk, 0)
        A(f"s_mov_b32 {s(sT[0])}, 0")
        for wk in range(1, WK):
            A(f"s_cmp_eq_u32 {s(s_wk)}, {wk}")
            A(f"s_cselect_b32 {s(sT[0])}, {w_const(mode, wk, 0)}, {s(sT[0])}")
        A(f"v_add_u32 {v(vt[1])}, {s(sT[0])}, {v(vt[1])}")
    A(f"v_mul_u32_u24 {v(vt[1])}, {RSW}, {v(vt[1])}")
    if RSW == 256:
        A(f"v_lshlrev_b32 {v(vt[2])}, 2, {v(vt[0])}")
    else:
        A(f"v_lshrrev_b32 {v(vt[2])}, 1, {v(vt[0])}")
        A(f"v_lshlrev_b32 {v(vt[2])}, 2, {v(vt[2])}")
    A(f"v_lshrrev_b32 {v(vt[3])}, 4, {v(v_lane)}")
    A(f"v_and_b32 {v(vt[3])}, 1, {v(vt[3])}")
    A(f"v_lshlrev_b32 {v(vt[3])}, 1, {v(vt[3])}")
    A(f"v_and_b32 {v(vt[4])}, 3, {v(v_lane)}")
    A(f"v_lshrrev_b32 {v(vt[5])}, 1, {v(vt[4])}")
    A(f"v_add_u32 {v(vt[3])}, {v(vt[3])}, {v(vt[5])}")
    A(f"s_mul_i32 {s(sT[0])}, {s(s_wn)}, {TN*4}")
    A(f"v_add_u32 {v(vt[3])}, {s(sT[0])}, {v(vt[3])}")
    A(f"v_and_b32 {v(vt[4])}, 1, {v(vt[4])}")
    A(f"v_lshlrev_b32 {v(vt[4])}, 3, {v(vt[4])}")
    A(f"v_add_u32 {v(vt[4])}, {v(vt[4])}, {v(vt[1])}")
    A(f"v_add_u32 {v(vt[4])}, {XB}, {v(vt[4])}")
    for a_ in range(TN):
        A(f"v_add_u32 {v(vt[5])}, {4*a_}, {v(vt[3])}")
        A(f"v_xor_b32 {v(vt[5])}, {v(vt[5])}, {v(vt[2])}")
        A(f"v_lshlrev_b32 {v(vt[5])}, 4, {v(vt[5])}")
        A(f"v_add_u32 {v(vWa[a_])}, {v(vt[4])}, {v(vt[5])}")

    if cfg.bias_karg is not None:
        A(f"s_waitcnt vmcnt({(2 if KS > 1 else 1)*ndma})")
        if WK > 1:
            lab = A.newlabel("Lz")
            A(f"s_cmp_eq_u32 {s(s_wk)}, 0")
            A(f"s_cbranch_scc1 {lab}")
            for a_ in range(TN):
                for i in range(4):
                    reg = (Wf[0][a_] + 2 * i) if i < 2 else (Wf[1][a_] + 2 * (i - 2))
                    A(f"v_mov_b32 {v(reg)}, 0")
                    A(f"v_mov_b32 {v(reg+1)}, 0")
            A.label(lab)
        for a_ in range(TN):
            for b in range(TM):
                for i in range(4):
                    reg = (Wf[0][a_] + 2 * i) if i < 2 else (Wf[1][a_] + 2 * (i - 2))
                    A(f"v_lshlrev_b32 {v(acc[a_][b]+4*i)}, 16, {v(reg)}")
                    A(f"v_and_b32 {v(acc[a_][b]+4*i+1)}, 0xffff0000, {v(reg)}")
                    A(f"v_lshlrev_b32 {v(acc[a_][b]+4*i+2)}, 16, {v(reg+1)}")
                    A(f"v_and_b32 {v(acc[a_][b]+4*i+3)}, 0xffff0000, {v(reg+1)}")
    else:
        for a_ in range(TN):
            for b in range(TM):
                for r in range(16):
                    A(f"v_mov_b32 {v(acc[a_][b]+r)}, 0")

    cur_base = [0]

    def set_stage(st):
        d = st * SST - cur_base[0]
        if d == 0:
            return
        for r in vXa + vWa:
            if d > 0:
                A(f"v_add_u32 {v(r)}, {d}, {v(r)}")
            else:
                A(f"v_subrev_u32 {v(r)}, {-d}, {v(r)}")
        cur_base[0] = st * SST

    def read_frags(par, tt):
        tbase = WK * tt
        for b in range(TM):
            A(f"ds_read_b128 {v(Xf[par][b],4)}, {v(vXa[tt])} offset:{b*4096}")
        for a_ in range(TN):
            for a2 in range(2):
                off = w_const(mode, tbase, a2) * RSW
                A(f"ds_read_b64_tr_b16 {v(Wf[par][a_]+2*a2,2)}, {v(vWa[a_])} offset:{off}")

    def mfmas(par):
        for a_ in range(TN):
            for b in range(TM):
                if cfg.orient == "T":
                    A(f"v_mfma_f32_32x32x16_bf16 {v(acc[a_][b],16)}, {v(Wf[par][a_],4)}, {v(Xf[par][b],4)}, {v(acc[a_][b],16)}")
                else:
                    A(f"v_mfma_f32_32x32x16_bf16 {v(acc[a_][b],16)}, {v(Xf[par][b],4)}, {v(Wf[par][a_],4)}, {v(acc[a_][b],16)}")

    A.c("---- wait for stage 0")
    A(f"s_waitcnt vmcnt({ndma if KS > 1 else 0})")
    A("s_barrier")
    par = 0
    read_frags(par, 0)
    for st_ in range(KS):
        A.c(f"---- k-step {st_}")
        for tt in range(NT):
            last_tt = tt == NT - 1
            sync_here = (tt == (NT - 1) // 2 if NT > 1 else True)
            if sync_here and st_ + 1 < KS:
                A("s_waitcnt vmcnt(0)")
                A("s_barrier")
                if st_ + 2 < KS:
                    dma_stage((st_ + 2) % NST)
            npar = par ^ 1
            issued = False
            if not last_tt:
                read_frags(npar, tt + 1)
                issued = True
            elif st_ + 1 < KS:
                set_stage((st_ + 1) % NST)
                read_frags(npar, 0)
                issued = True
            A(f"s_waitcnt lgkmcnt({nlds if issued else 0})")
            mfmas(par)
            par = npar
    A.nop(16)

    if WK > 1:
        tile_bytes = TM * TN * 4096
        A("s_barrier")
        lab_red = A.newlabel("Lred")
        lab_done = A.newlabel("Lwdone")
        A(f"s_lshr_b32 {s(sT[0])}, {s(s_wave)}, {WK.bit_length()-1}")
        A(f"s_mul_i32 {s(sT[0])}, {s(sT[0])}, {(WK-1)*tile_bytes}")
        A(f"v_lshlrev_b32 {v(vt[0])}, 4, {v(v_lane)}")
        A(f"v_add_u32 {v(vt[0])}, {s(sT[0])}, {v(vt[0])}")
        A(f"s_cmp_eq_u32 {s(s_wk)}, 0")
        A(f"s_cbranch_scc1 {lab_red}")
        A(f"s_sub_u32 {s(sT[1])}, {s(s_wk)}, 1")
        A(f"s_mul_i32 {s(sT[1])}, {s(sT[1])}, {tile_bytes}")
        A(f"v_add_u32 {v(vt[0])}, {s(sT[1])}, {v(vt[0])}")
        k = 0
        for a_ in range(TN):
            for b in range(TM):
                for q in range(4):
                    A(f"ds_write_b128 {v(vt[0])}, {v(acc[a_][b]+4*q,4)} offset:{k*1024}")
                    k += 1
        A("s_waitcnt lgkmcnt(0)")
        A("s_barrier")
        A("s_endpgm")
        A.label(lab_red)
        A("s_barrier")
        tmp = Xf[0][0]
        for j in range(WK - 1):
            k = 0
            for a_ in range(TN):
                for b in range(TM):
                    for q in range(4):
                        A(f"ds_read_b128 {v(tmp + 4*(k&1),4)}, {v(vt[0])} offset:{j*tile_bytes + k*1024}")
                        A("s_waitcnt lgkmcnt(0)")
                        for e in range(4):
                            A(f"v_add_f32 {v(acc[a_][b]+4*q+e)}, {v(acc[a_][b]+4*q+e)}, {v(tmp+4*(k&1)+e)}")
                        k += 1
    cfg.BM, cfg.BN = BM, BN
    cfg.epilogue(A, cfg)
    A("s_endpgm")
    return V.hi, S.hi


def _store_temps(cfg):
    Xf, Wf = cfg.vregs["Xf"], cfg.vregs["Wf"]
    t = [Xf[0][0], Xf[1][0], Wf[0][0], Wf[1][0]]
    return t


def epi_qk(A, cfg):
    vr, sr = cfg.vregs, cfg.sregs
    acc, v_lane, vt = vr["acc"], vr["v_lane"], vr["vt"]
    sT, srdD = sr["sT"], sr["srdD"]
    TM, TN = cfg.TM, cfg.TN
    tq = _store_temps(cfg)
    A(f"s_cmp_lt_u32 {s(sr['s_nblk'])}, 4")
    A(f"s_cselect_b32 {s(sT[5])}, 0x{f32bits(QSCALE):08x}, 1.0")
    A(f"s_lshr_b32 {s(sT[0])}, {s(sr['s_nblk'])}, 2")
    A(f"s_lshl_b32 {s(sT[0])}, {s(sT[0])}, 21")
    A(f"s_and_b32 {s(sT[1])}, {s(sr['s_nblk'])}, 3")
    A(f"s_lshl_b32 {s(sT[1])}, {s(sT[1])}, 3")
    A(f"s_mul_i32 {s(sT[2])}, {s(sr['s_wn'])}, {TN*2}")
    A(f"s_add_u32 {s(sT[1])}, {s(sT[1])}, {s(sT[2])}")
    A(f"s_lshl_b32 {s(sT[1])}, {s(sT[1])}, 16")
    A(f"s_add_u32 {s(sT[0])}, {s(sT[0])}, {s(sT[1])}")
    A(f"s_mul_i32 {s(sT[1])}, {s(sr['s_mblk'])}, {cfg.BM//32}")
    A(f"s_mul_i32 {s(sT[2])}, {s(sr['s_wm'])}, {TM}")
    A(f"s_add_u32 {s(sT[1])}, {s(sT[1])}, {s(sT[2])}")
    A(f"s_lshl_b32 {s(sT[1])}, {s(sT[1])}, 10")
    A(f"s_add_u32 {s(sT[0])}, {s(sT[0])}, {s(sT[1])}")
    A(f"v_lshlrev_b32 {v(vt[0])}, 4, {v(v_lane)}")
    n = 0
    for a_ in range(TN):
        for b in range(TM):
            for hs in range(2):
                base = acc[a_][b] + 8 * hs
                for r in range(8):
                    A(f"v_mul_f32 {v(base+r)}, {s(sT[5])}, {v(base+r)}")
                t = tq[n % 4]
                for p in range(4):
                    A(f"v_cvt_pk_bf16_f32 {v(t+p)}, {v(base+2*p)}, {v(base+2*p+1)}")
                off = ((2 * a_ + hs) * 65536 + b * 1024)
                A(f"s_add_u32 {s(sT[1])}, {s(sT[0])}, {off}")
                A(f"buffer_store_dwordx4 {v(t,4)}, {v(vt[0])}, {s(srdD,4)}, {s(sT[1])} offen")
                n += 1


def epi_v(A, cfg):
    vr, sr = cfg.vregs, cfg.sregs
    acc, v_lane, vt, v_hh = vr["acc"], vr["v_lane"], vr["vt"], vr["v_hh"]
    sT, srdD = sr["sT"], sr["srdD"]
    TM, TN = cfg.TM, cfg.TN
    tq = _store_temps(cfg)
    A(f"s_lshl_b32 {s(sT[0])}, {s(sr['s_nblk'])}, 3")
    A(f"s_mul_i32 {s(sT[1])}, {s(sr['s_wn'])}, {TN*2}")
    A(f"s_add_u32 {s(sT[0])}, {s(sT[0])}, {s(sT[1])}")
    A(f"s_lshl_b32 {s(sT[0])}, {s(sT[0])}, 16")
    A(f"s_mul_i32 {s(sT[1])}, {s(sr['s_mblk'])}, {cfg.BM//16}")
    A(f"s_mul_i32 {s(sT[2])}, {s(sr['s_wm'])}, {TM*2}")
    A(f"s_add_u32 {s(sT[1])}, {s(sT[1])}, {s(sT[2])}")
    A(f"s_lshl_b32 {s(sT[1])}, {s(sT[1])}, 9")
    A(f"s_add_u32 {s(sT[0])}, {s(sT[0])}, {s(sT[1])}")
    A(f"v_lshrrev_b32 {v(vt[1])}, 4, {v(v_lane)}")
    A(f"v_and_b32 {v(vt[1])}, 1, {v(vt[1])}")
    A(f"v_lshlrev_b32 {v(vt[1])}, 16, {v(vt[1])}")
    A(f"v_and_b32 {v(vt[2])}, 15, {v(v_lane)}")
    A(f"v_lshlrev_b32 {v(vt[2])}, 4, {v(vt[2])}")
    A(f"v_add_u32 {v(vt[1])}, {v(vt[1])}, {v(vt[2])}")
    A(f"v_lshlrev_b32 {v(vt[2])}, 8, {v(v_hh)}")
    A(f"v_add_u32 {v(vt[0])}, {v(vt[1])}, {v(vt[2])}")
    n = 0
    for a_ in range(TN):
        for b in range(TM):
            for gs in range(2):
                base = acc[a_][b] + 8 * gs
                t = tq[n % 4]
                for p in range(4):
                    A(f"v_cvt_pk_bf16_f32 {v(t+p)}, {v(base+2*p)}, {v(base+2*p+1)}")
                off = (2 * a_) * 65536 + (2 * b + gs) * 512
                A(f"s_add_u32 {s(sT[1])}, {s(sT[0])}, {off}")
                A(f"buffer_store_dwordx4 {v(t,4)}, {v(vt[0])}, {s(srdD,4)}, {s(sT[1])} offen")
                n += 1


def epi_h(A, cfg):
    vr, sr = cfg.vregs, cfg.sregs
    acc, v_tl, vt, v_hh = vr["acc"], vr["v_tl"], vr["vt"], vr["v_hh"]
    sT, srdD = sr["sT"], sr["srdD"]
    TM, TN = cfg.TM, cfg.TN
    Xf, Wf = vr["Xf"], vr["Wf"]
    HS = F * 2
    A(f"s_mul_i32 {s(sT[0])}, {s(sr['s_mblk'])}, {cfg.BM}")
    A(f"s_mul_i32 {s(sT[1])}, {s(sr['s_wm'])}, {TM*32}")
    A(f"s_add_u32 {s(sT[0])}, {s(sT[0])}, {s(sT[1])}")
    A(f"s_mul_i32 {s(sT[0])}, {s(sT[0])}, {HS}")
    A(f"s_mul_i32 {s(sT[1])}, {s(sr['s_nblk'])}, {cfg.BN*2}")
    A(f"s_add_u32 {s(sT[0])}, {s(sT[0])}, {s(sT[1])}")
    A(f"s_mul_i32 {s(sT[1])}, {s(sr['s_wn'])}, {TN*64}")
    A(f"s_add_u32 {s(sT[0])}, {s(sT[0])}, {s(sT[1])}")
    A(f"s_mov_b32 {s(sT[2])}, {HS}")
    A(f"v_mul_lo_u32 {v(vt[0])}, {v(v_tl)}, {s(sT[2])}")
    A(f"v_lshlrev_b32 {v(vt[1])}, 5, {v(v_hh)}")
    A(f"v_add_u32 {v(vt[0])}, {v(vt[0])}, {v(vt[1])}")
    packs = [(Xf[0][0], Xf[1][0]), (Wf[0][0], Wf[1][0])]
    n = 0
    for a_ in range(TN):
        for b in range(TM):
            base = acc[a_][b]
            q0, q1 = packs[n % 2]
            for r in range(16):
                A(f"v_max_f32 {v(base+r)}, 0, {v(base+r)}")
                A(f"v_mul_f32 {v(base+r)}, {v(base+r)}, {v(base+r)}")
            for p in range(4):
                A(f"v_cvt_pk_bf16_f32 {v(q0+p)}, {v(base+2*p)}, {v(base+2*p+1)}")
            for p in range(4):
                A(f"v_cvt_pk_bf16_f32 {v(q1+p)}, {v(base+8+2*p)}, {v(base+8+2*p+1)}")
            off = 32 * b * HS + 32 * a_ * 2
            A(f"s_add_u32 {s(sT[1])}, {s(sT[0])}, {off}")
            A(f"buffer_store_dwordx4 {v(q0,4)}, {v(vt[0])}, {s(srdD,4)}, {s(sT[1])} offen")
            A(f"buffer_store_dwordx4 {v(q1,4)}, {v(vt[0])}, {s(srdD,4)}, {s(sT[1])} offen offset:16")
            n += 1


def epi_b(A, cfg):
    vr, sr = cfg.vregs, cfg.sregs
    acc, v_lane, vt = vr["acc"], vr["v_lane"], vr["vt"]
    sT, srdD = sr["sT"], sr["srdD"]
    TM, TN = cfg.TM, cfg.TN
    Xf, Wf = vr["Xf"], vr["Wf"]
    A(f"s_mul_i32 {s(sT[0])}, {s(sr['s_mblk'])}, {cfg.BM//32}")
    A(f"s_mul_i32 {s(sT[1])}, {s(sr['s_wm'])}, {TM}")
    A(f"s_add_u32 {s(sT[0])}, {s(sT[0])}, {s(sT[1])}")
    A(f"s_lshl_b32 {s(sT[0])}, {s(sT[0])}, 4")
    A(f"s_mul_i32 {s(sT[1])}, {s(sr['s_nblk'])}, {cfg.BN//32}")
    A(f"s_add_u32 {s(sT[0])}, {s(sT[0])}, {s(sT[1])}")
    A(f"s_mul_i32 {s(sT[1])}, {s(sr['s_wn'])}, {TN}")
    A(f"s_add_u32 {s(sT[0])}, {s(sT[0])}, {s(sT[1])}")
    A(f"s_lshl_b32 {s(sT[0])}, {s(sT[0])}, 11")
    A(f"v_lshlrev_b32 {v(vt[0])}, 5, {v(v_lane)}")
    packs = [(Xf[0][0], Xf[1][0]), (Wf[0][0], Wf[1][0])]
    n = 0
    for a_ in range(TN):
        for b in range(TM):
            base = acc[a_][b]
            q0, q1 = packs[n % 2]
            for p in range(4):
                A(f"v_cvt_pk_bf16_f32 {v(q0+p)}, {v(base+2*p)}, {v(base+2*p+1)}")
            for p in range(4):
                A(f"v_cvt_pk_bf16_f32 {v(q1+p)}, {v(base+8+2*p)}, {v(base+8+2*p+1)}")
            off = (b * 16 + a_) * 2048
            A(f"s_add_u32 {s(sT[1])}, {s(sT[0])}, {off}")
            A(f"buffer_store_dwordx4 {v(q0,4)}, {v(vt[0])}, {s(srdD,4)}, {s(sT[1])} offen")
            A(f"buffer_store_dwordx4 {v(q1,4)}, {v(vt[0])}, {s(srdD,4)}, {s(sT[1])} offen offset:16")
            n += 1


def epi_out(A, cfg):
    vr, sr = cfg.vregs, cfg.sregs
    acc, v_lane, v_tl, v_hh, vt = vr["acc"], vr["v_lane"], vr["v_tl"], vr["v_hh"], vr["vt"]
    sT, srdD, srdB, sPWS = sr["sT"], sr["srdD"], sr["srdB"], sr["sPWS"]
    TM, TN = cfg.TM, cfg.TN
    Xf, Wf = vr["Xf"], vr["Wf"]
    bq = [Xf[0][0], Xf[1][0]]
    oq = [Wf[0][0], Wf[1][0]]
    A.add64(sT[0], sPWS, WS_B)
    A.srd(srdB, sT[0], WS_G + S_TOK * 4 - WS_B)
    A(f"v_lshlrev_b32 {v(vt[0])}, 5, {v(v_lane)}")
    A(f"v_lshlrev_b32 {v(vt[1])}, 2, {v(v_tl)}")
    A(f"v_lshlrev_b32 {v(vt[2])}, 10, {v(v_tl)}")
    A(f"v_lshlrev_b32 {v(vt[3])}, 3, {v(v_hh)}")
    A(f"v_add_u32 {v(vt[2])}, {v(vt[2])}, {v(vt[3])}")
    A(f"s_mul_i32 {s(sT[0])}, {s(sr['s_mblk'])}, {cfg.BM//32}")
    A(f"s_mul_i32 {s(sT[1])}, {s(sr['s_wm'])}, {TM}")
    A(f"s_add_u32 {s(sT[0])}, {s(sT[0])}, {s(sT[1])}")
    A(f"s_mul_i32 {s(sT[1])}, {s(sr['s_nblk'])}, {cfg.BN//32}")
    A(f"s_mul_i32 {s(sT[2])}, {s(sr['s_wn'])}, {TN}")
    A(f"s_add_u32 {s(sT[1])}, {s(sT[1])}, {s(sT[2])}")
    for a_ in range(TN):
        for b in range(TM):
            base = acc[a_][b]
            A(f"s_add_u32 {s(sT[2])}, {s(sT[0])}, {b}")
            A(f"s_lshl_b32 {s(sT[3])}, {s(sT[2])}, 4")
            A(f"s_add_u32 {s(sT[3])}, {s(sT[3])}, {s(sT[1])}")
            A(f"s_add_u32 {s(sT[3])}, {s(sT[3])}, {a_}")
            A(f"s_lshl_b32 {s(sT[3])}, {s(sT[3])}, 11")
            A(f"buffer_load_dwordx4 {v(bq[0],4)}, {v(vt[0])}, {s(srdB,4)}, {s(sT[3])} offen")
            A(f"buffer_load_dwordx4 {v(bq[1],4)}, {v(vt[0])}, {s(srdB,4)}, {s(sT[3])} offen offset:16")
            A(f"s_lshl_b32 {s(sT[4])}, {s(sT[2])}, 7")
            A(f"s_add_u32 {s(sT[4])}, {s(sT[4])}, {WS_G - WS_B}")
            A(f"buffer_load_dword {v(vt[4])}, {v(vt[1])}, {s(srdB,4)}, {s(sT[4])} offen")
            A(f"s_lshl_b32 {s(sT[4])}, {s(sT[2])}, 15")
            A(f"s_add_u32 {s(sT[5])}, {s(sT[1])}, {a_}")
            A(f"s_lshl_b32 {s(sT[5])}, {s(sT[5])}, 6")
            A(f"s_add_u32 {s(sT[4])}, {s(sT[4])}, {s(sT[5])}")
            A("s_waitcnt vmcnt(0)")
            A(f"v_sub_f32 {v(vt[5])}, 1.0, {v(vt[4])}")
            A(f"v_cvt_pk_bf16_f32 {v(vt[5])}, {v(vt[5])}, {v(vt[5])}")
            A(f"v_lshlrev_b32 {v(vt[5])}, 16, {v(vt[5])}")
            for p in range(8):
                r0, r1 = base + 2 * p, base + 2 * p + 1
                braw = bq[p >> 2] + (p & 3)
                A(f"v_cvt_pk_bf16_f32 {v(vt[3])}, {v(r0)}, {v(r1)}")
                A(f"v_lshlrev_b32 {v(r0)}, 16, {v(vt[3])}")
                A(f"v_and_b32 {v(r1)}, 0xffff0000, {v(vt[3])}")
                A(f"v_mul_f32 {v(r0)}, {v(r0)}, {v(vt[4])}")
                A(f"v_mul_f32 {v(r1)}, {v(r1)}, {v(vt[4])}")
                A(f"v_cvt_pk_bf16_f32 {v(vt[3])}, {v(r0)}, {v(r1)}")
                A(f"v_lshlrev_b32 {v(r0)}, 16, {v(braw)}")
                A(f"v_and_b32 {v(r1)}, 0xffff0000, {v(braw)}")
                A(f"v_mul_f32 {v(r0)}, {v(r0)}, {v(vt[5])}")
                A(f"v_mul_f32 {v(r1)}, {v(r1)}, {v(vt[5])}")
                A(f"v_cvt_pk_bf16_f32 {v(braw)}, {v(r0)}, {v(r1)}")
                A(f"v_lshlrev_b32 {v(r0)}, 16, {v(vt[3])}")
                A(f"v_and_b32 {v(r1)}, 0xffff0000, {v(vt[3])}")
                A(f"v_lshlrev_b32 {v(vt[3])}, 16, {v(braw)}")
                A(f"v_add_f32 {v(r0)}, {v(r0)}, {v(vt[3])}")
                A(f"v_and_b32 {v(vt[3])}, 0xffff0000, {v(braw)}")
                A(f"v_add_f32 {v(r1)}, {v(r1)}, {v(vt[3])}")
                A(f"v_cvt_pk_bf16_f32 {v(oq[p>>2]+(p&3))}, {v(r0)}, {v(r1)}")
            for i in range(4):
                q = oq[i >> 1] + 2 * (i & 1)
                A(f"buffer_store_dwordx2 {v(q,2)}, {v(vt[2])}, {s(srdD,4)}, {s(sT[4])} offen offset:{16*i}")
```

```python
S_TOK = 2048
D = 512
F = 1792
NH = 32
DH = 16

WS_QP = 0x0000000
WS_KP = 0x0200000
WS_VP = 0x0400000
WS_H = 0x0600000
WS_O = 0x0D00000
WS_B = 0x0F00000
WS_G = 0x1100000
WS_END = 0x1102000
WS_SIZE = 268435456

KA_X = 0
KA_WQKV = 8
KA_WO = 16
KA_BX = 24
KA_W1 = 32
KA_B1 = 40
KA_W2 = 48
KA_B2 = 56
KA_GW = 64
KA_OUT = 72
KA_DBG = 80
KA_WS = 88

SZ_X = S_TOK * D * 2
SZ_WQKV = D * 3 * D * 2
SZ_WO = D * D * 2
SZ_W1 = D * F * 2
SZ_B1 = F * 2
SZ_W2 = F * D * 2
SZ_B2 = D * 2
SZ_GW = D * 2
SZ_OUT = S_TOK * D * 2

QSCALE = 0.25 * 1.4426950408889634
```

```python
import os
import sys
sys.path.insert(0, os.path.dirname(os.path.abspath(__file__)))
from asmlib import *
from layout import *
import k_gemm
from k_gemm import Cfg, emit_gemm, epi_qk, epi_v, epi_h, epi_b, epi_out
from k_gate import emit_gate
import k_attn
from k_attn import emit_attn

NAME = "gated_mix__softmax_full_mha__dense_activation_squared_relu__prompt"
HERE = os.path.dirname(os.path.abspath(__file__))
OUT = os.path.join(HERE, "..", "cdna_kernels", NAME + ".s")

HEADER = """; Kernarg layout for this problem (96 bytes, ptrs only, base s[0:1]):
"""


def cfg_qk():
    return Cfg(name="QK", WM=4, WN=2, WK=1, TM=2, TN=2, K=512, orient="T", wperm="id", max_vgpr=128,
               x_src=("karg", KA_X), x_size=SZ_X, x_stride=1024, x_col0=0,
               w_karg=KA_WQKV, w_size=SZ_WQKV, w_stride=3072, w_col0=0, nmblk=8,
               d_off=WS_QP, d_size=0x400000, bias_karg=None, bias_size=0, epilogue=epi_qk)


def cfg_v():
    return Cfg(name="V", WM=4, WN=2, WK=1, TM=2, TN=2, K=512, orient="N", wperm="id", max_vgpr=128,
               x_src=("karg", KA_X), x_size=SZ_X, x_stride=1024, x_col0=0,
               w_karg=KA_WQKV, w_size=SZ_WQKV, w_stride=3072, w_col0=1024, nmblk=8,
               d_off=WS_VP, d_size=0x200000, bias_karg=None, bias_size=0, epilogue=epi_v)


def cfg_f1():
    return Cfg(name="F1", WM=4, WN=2, WK=1, TM=2, TN=2, K=512, orient="T", wperm="id", max_vgpr=128,
               x_src=("karg", KA_X), x_size=SZ_X, x_stride=1024, x_col0=0,
               w_karg=KA_W1, w_size=SZ_W1, w_stride=3584, w_col0=0, nmblk=8,
               d_off=WS_H, d_size=S_TOK * F * 2, bias_karg=KA_B1, bias_size=SZ_B1, epilogue=epi_h)


def build_k1():
    A = Asm()
    name = "k1_proj_kernel"
    roles = [(64, "QK"), (32, "V"), (112, "F1"), (32, "G")]
    total = sum(n for n, _ in roles)
    A(f"s_cmp_ge_u32 s2, {total}")
    A("s_cbranch_scc1 k1_exit")
    start = 0
    labs = []
    for n, r in roles:
        lab = f"k1_role_{r}"
        labs.append((start, n, r, lab))
        start += n
    for start, n, r, lab in labs[:-1]:
        A(f"s_cmp_lt_u32 s2, {start+n}")
        A(f"s_cbranch_scc1 {lab}")
    A(f"s_branch {labs[-1][3]}")
    A.label("k1_exit")
    A("s_endpgm")
    vmax, smax = 8, 8
    for start, n, r, lab in labs:
        A.label(lab)
        A(f"s_sub_u32 s3, s2, {start}")
        if r == "QK":
            vh, sh = emit_gemm(A, cfg_qk(), 3)
        elif r == "V":
            vh, sh = emit_gemm(A, cfg_v(), 3)
        elif r == "F1":
            vh, sh = emit_gemm(A, cfg_f1(), 3)
        else:
            vh, sh = emit_gate(A, 3)
        vmax, smax = max(vmax, vh), max(smax, sh)
    lds = 3 * (256 * 128 + 64 * 256)
    launch = f"; @launch kernel={name} grid=({total},1,1) block=(512,1,1) lds={lds}"
    text = kernel_header(name) + A.text() + kernel_descriptor(name, vmax, smax + 6)
    return launch, text


def build_k2(NW=16):
    A = Asm()
    name = "k2_attn_kernel"
    A("s_cmp_ge_u32 s2, 256")
    A("s_cbranch_scc1 k2_exit")
    A("s_branch k2_role_A")
    A.label("k2_exit")
    A("s_endpgm")
    A.label("k2_role_A")
    A("s_mov_b32 s3, s2")
    vh, sh = emit_attn(A, 3, NW=NW)
    launch = f"; @launch kernel={name} grid=(256,1,1) block=({NW*64},1,1) lds={k_attn.LDS_TOTAL}"
    text = kernel_header(name) + A.text() + kernel_descriptor(name, vh, sh + 6)
    return launch, text


def cfg_f2():
    return Cfg(name="F2", WM=2, WN=2, WK=2, TM=1, TN=1, K=1792, orient="T", wperm="hperm", max_vgpr=128,
               x_src=("ws", WS_H), x_size=S_TOK * F * 2, x_stride=3584, x_col0=0,
               w_karg=KA_W2, w_size=SZ_W2, w_stride=1024, w_col0=0, nmblk=32,
               d_off=WS_B, d_size=0x200000, bias_karg=KA_B2, bias_size=SZ_B2, epilogue=epi_b)


def cfg_out():
    return Cfg(name="OUT", WM=2, WN=2, WK=2, TM=1, TN=1, K=512, orient="T", wperm="operm", max_vgpr=128,
               x_src=("ws", WS_O), x_size=0x200000, x_stride=1024, x_col0=0,
               w_karg=KA_WO, w_size=SZ_WO, w_stride=1024, w_col0=0, nmblk=32,
               d_off=None, d_size=SZ_OUT, bias_karg=None, bias_size=0, epilogue=epi_out)


def build_simple_gemm(name, cfg, nwg):
    A = Asm()
    A(f"s_cmp_ge_u32 s2, {nwg}")
    A(f"s_cbranch_scc1 {name}_exit")
    A(f"s_branch {name}_role")
    A.label(f"{name}_exit")
    A("s_endpgm")
    A.label(f"{name}_role")
    A("s_mov_b32 s3, s2")
    vh, sh = emit_gemm(A, cfg, 3)
    lds = 3 * (64 * 128 + 64 * 128)
    launch = f"; @launch kernel={name} grid=({nwg},1,1) block=(512,1,1) lds={lds}"
    text = kernel_header(name) + A.text() + kernel_descriptor(name, vh, sh + 6)
    return launch, text


def build_k3():
    return build_simple_gemm("k3_ffn2_kernel", cfg_f2(), 256)


def build_k4():
    return build_simple_gemm("k4_out_kernel", cfg_out(), 256)


def main():
    launches, texts = [], []
    for b in (build_k1, build_k2, build_k3, build_k4):
        l, t = b()
        launches.append(l)
        texts.append(t)
    out = HEADER + "\n".join(launches) + "\n" + '.amdgcn_target "amdgcn-amd-amdhsa--gfx950"\n' + "\n".join(texts)
    with open(OUT, "w") as f:
        f.write(out)
    print("wrote", OUT, len(out), "bytes")


if __name__ == "__main__":
    main()
```

```python
from asmlib import *
from layout import *

LDS_K = 0
LDS_V = 65536
LDS_SCR = 131072
LDS_MRG = 131072 + 256
LDS_TOTAL = LDS_MRG + 8 * 2304


WS_DIAG = 0x4000000


def emit_attn(A, s_idx, NW=16, max_vgpr=128, diag=False):
    split = NW == 16
    NI = 32 if split else 64
    TSTR = 2048 if split else 1024
    CPI = NI // 4
    NTW = 64 // NW
    DPC = 16 // NW

    V = Regs("v", 1, max_vgpr)
    S = Regs("s", 4, 96)
    sPWS = S.alloc(2, 2)
    sPB = S.alloc(2, 2)
    srdQ = S.alloc(4, 4)
    srdK = S.alloc(4, 4)
    srdV = S.alloc(4, 4)
    srdO = S.alloc(4, 4)
    s_wave = S.alloc()
    s_head = S.alloc()
    s_qblk = S.alloc()
    s_qt = S.alloc()
    s_kh = S.alloc()
    s_hoff = S.alloc()
    sMaskV = S.alloc(2, 2)
    sT = [S.alloc() for _ in range(8)]
    sCnt = S.alloc()
    sStamp = [S.alloc(2, 2) for _ in range(7)] if diag else None

    def stamp(k):
        if diag:
            A(f"s_memtime {s(sStamp[k],2)}" if k < 5 else f"s_memrealtime {s(sStamp[k],2)}")
            A("s_waitcnt lgkmcnt(0)")

    Sb = [V.alloc(16, 4), V.alloc(16, 4)]
    Cb = V.alloc(16, 4)
    Ob = V.alloc(16, 4)
    Pb = V.alloc(8, 4)
    Qf = V.alloc(4, 4)
    Kf = [V.alloc(4, 4), V.alloc(4, 4)]
    Vf = [[V.alloc(4, 4), V.alloc(4, 4)], [V.alloc(4, 4), V.alloc(4, 4)]]
    vKa = V.alloc()
    vVa = V.alloc()
    v_lane = V.alloc()
    v_hh = V.alloc()
    v_l16 = V.alloc()
    vt = [V.alloc() for _ in range(8)]

    A.c(f"==== attention role NW={NW}")
    stamp(0)
    stamp(5)
    A(f"s_load_dwordx2 {s(sPWS,2)}, s[0:1], {KA_WS}")
    A(f"v_lshrrev_b32 {v(vt[0])}, 6, v0")
    A(f"v_and_b32 {v(v_lane)}, 63, v0")
    A("s_nop 0")
    A(f"v_readfirstlane_b32 {s(s_wave)}, {v(vt[0])}")
    A(f"v_lshrrev_b32 {v(v_hh)}, 5, {v(v_lane)}")
    A(f"v_lshlrev_b32 {v(v_l16)}, 4, {v(v_lane)}")
    A(f"s_and_b32 {s(s_head)}, {s(s_idx)}, 31")
    A(f"s_lshr_b32 {s(s_qblk)}, {s(s_idx)}, 5")
    A(f"s_and_b32 {s(s_qt)}, {s(s_wave)}, 7")
    A(f"s_lshr_b32 {s(s_kh)}, {s(s_wave)}, 3")
    A(f"s_mov_b32 {s(sMaskV)}, 0x0000ffff")
    A(f"s_mov_b32 {s(sMaskV+1)}, 0x0000ffff")
    A("s_waitcnt lgkmcnt(0)")
    for srd, off in ((srdQ, WS_QP), (srdK, WS_KP), (srdV, WS_VP), (srdO, WS_O)):
        A.add64(sPB, sPWS, off)
        A.srd(srd, sPB, 0x200000)
    A(f"s_lshl_b32 {s(s_hoff)}, {s(s_head)}, 16")
    Kn = [Sb[0] + 4 * j for j in range(4)] + [Sb[1] + 4 * j for j in range(4)]
    assert NTW <= 8
    A(f"s_mul_i32 {s(sT[0])}, {s(s_wave)}, {NTW*1024}")
    A(f"s_add_u32 {s(sT[0])}, {s(sT[0])}, {s(s_hoff)}")
    for j in range(NTW):
        A(f"s_add_u32 {s(sT[1])}, {s(sT[0])}, {j*1024}")
        A(f"buffer_load_dwordx4 {v(Kn[j],4)}, {v(v_l16)}, {s(srdK,4)}, {s(sT[1])} offen")
    A(f"s_lshl_b32 {s(sT[0])}, {s(s_qblk)}, 3")
    A(f"s_add_u32 {s(sT[0])}, {s(sT[0])}, {s(s_qt)}")
    A(f"s_lshl_b32 {s(sT[0])}, {s(sT[0])}, 10")
    A(f"s_add_u32 {s(sT[0])}, {s(sT[0])}, {s(s_hoff)}")
    A(f"buffer_load_dwordx4 {v(Qf,4)}, {v(v_l16)}, {s(srdQ,4)}, {s(sT[0])} offen")
    A(f"s_mul_i32 {s(sT[2])}, {s(s_wave)}, {DPC*1024}")
    A(f"s_add_u32 {s(sT[3])}, {s(sT[2])}, {s(s_hoff)}")
    for c in range(4):
        for u in range(DPC):
            o = c * 16384 + u * 1024
            A(f"s_add_u32 m0, {s(sT[2])}, {LDS_K + o}")
            A(f"s_add_u32 {s(sT[4])}, {s(sT[3])}, {o}")
            A(f"buffer_load_dwordx4 {v(v_l16)}, {s(srdK,4)}, {s(sT[4])} offen lds")
        for u in range(DPC):
            o = c * 16384 + u * 1024
            A(f"s_add_u32 m0, {s(sT[2])}, {LDS_V + o}")
            A(f"s_add_u32 {s(sT[4])}, {s(sT[3])}, {o}")
            A(f"buffer_load_dwordx4 {v(v_l16)}, {s(srdV,4)}, {s(sT[4])} offen lds")
    ndma = 8 * DPC
    A(f"s_lshl_b32 {s(sT[0])}, {s(s_kh)}, 10" if split else f"s_mov_b32 {s(sT[0])}, 0")
    A(f"v_add_u32 {v(vKa)}, {s(sT[0])}, {v(v_l16)}")
    A(f"v_and_b32 {v(vt[0])}, 15, {v(v_lane)}")
    A(f"v_lshlrev_b32 {v(vt[1])}, 4, {v(v_hh)}")
    A(f"v_add_u32 {v(vt[0])}, {v(vt[0])}, {v(vt[1])}")
    A(f"v_lshlrev_b32 {v(vt[0])}, 4, {v(vt[0])}")
    A(f"s_add_u32 {s(sT[0])}, {s(sT[0])}, {LDS_V}")
    A(f"v_add_u32 {v(vVa)}, {s(sT[0])}, {v(vt[0])}")
    A(f"v_and_b32 {v(vt[0])}, 31, {v(v_lane)}")
    A(f"v_cmp_eq_u32 vcc, 16, {v(vt[0])}")
    A(f"v_mov_b32 {v(vt[1])}, 0x3f803f80")
    A("s_nop 1")
    A(f"v_cndmask_b32 {v(vt[2])}, 0, {v(vt[1])}, vcc")
    for bsel in range(2):
        for m in range(2):
            for r in range(4):
                A(f"v_mov_b32 {v(Vf[bsel][m]+r)}, {v(vt[2])}")
    for r in range(16):
        A(f"v_mov_b32 {v(Ob+r)}, 0")

    def sq_sum(dst, src4):
        A(f"v_mov_b32 {v(dst)}, 0")
        for p in range(4):
            A(f"v_lshlrev_b32 {v(vt[6])}, 16, {v(src4+p)}")
            A(f"v_and_b32 {v(vt[7])}, 0xffff0000, {v(src4+p)}")
            A(f"v_fma_f32 {v(dst)}, {v(vt[6])}, {v(vt[6])}, {v(dst)}")
            A(f"v_fma_f32 {v(dst)}, {v(vt[7])}, {v(vt[7])}, {v(dst)}")

    def half_sum(x, t):
        A(f"v_mov_b32 {v(t)}, {v(x)}")
        A("s_nop 1")
        A(f"v_permlane32_swap_b32 {v(t)}, {v(x)}")
        A("s_nop 1")
        A(f"v_add_f32 {v(x)}, {v(x)}, {v(t)}")

    A(f"s_waitcnt vmcnt({ndma})")
    for j in range(NTW):
        sq_sum(vt[0], Kn[j])
        half_sum(vt[0], vt[1])
        if j == 0:
            A(f"v_mov_b32 {v(vt[2])}, {v(vt[0])}")
        else:
            A(f"v_max_f32 {v(vt[2])}, {v(vt[2])}, {v(vt[0])}")
    sq_sum(vt[3], Qf)
    half_sum(vt[3], vt[1])
    A("s_nop 1")
    A(f"v_max_f32_dpp {v(vt[0])}, {v(vt[2])}, {v(vt[2])} quad_perm:[1,0,3,2] row_mask:0xf bank_mask:0xf")
    A("s_nop 1")
    A(f"v_max_f32_dpp {v(vt[1])}, {v(vt[0])}, {v(vt[0])} quad_perm:[2,3,0,1] row_mask:0xf bank_mask:0xf")
    A("s_nop 1")
    A(f"v_max_f32_dpp {v(vt[0])}, {v(vt[1])}, {v(vt[1])} row_half_mirror row_mask:0xf bank_mask:0xf")
    A("s_nop 1")
    A(f"v_max_f32_dpp {v(vt[1])}, {v(vt[0])}, {v(vt[0])} row_mirror row_mask:0xf bank_mask:0xf")
    A("s_nop 1")
    A(f"v_readlane_b32 {s(sT[0])}, {v(vt[1])}, 0")
    A(f"v_readlane_b32 {s(sT[1])}, {v(vt[1])}, 16")
    A(f"v_readlane_b32 {s(sT[2])}, {v(vt[1])}, 32")
    A(f"v_readlane_b32 {s(sT[3])}, {v(vt[1])}, 48")
    A("s_nop 3")
    A(f"s_max_u32 {s(sT[0])}, {s(sT[0])}, {s(sT[1])}")
    A(f"s_max_u32 {s(sT[2])}, {s(sT[2])}, {s(sT[3])}")
    A(f"s_max_u32 {s(sT[0])}, {s(sT[0])}, {s(sT[2])}")
    A(f"v_mov_b32 {v(vt[0])}, {s(sT[0])}")
    A(f"s_lshl_b32 {s(sT[1])}, {s(s_wave)}, 2")
    A(f"s_add_u32 {s(sT[1])}, {s(sT[1])}, {LDS_SCR}")
    A(f"v_mov_b32 {v(vt[1])}, {s(sT[1])}")
    A(f"ds_write_b32 {v(vt[1])}, {v(vt[0])}")
    A(f"s_waitcnt vmcnt({ndma - 2*DPC}) lgkmcnt(0)")
    A("s_barrier")
    stamp(1)
    A(f"v_mov_b32 {v(vt[1])}, {LDS_SCR}")
    for q in range(NW // 4):
        A(f"ds_read_b128 {v(Sb[0]+4*q,4)}, {v(vt[1])} offset:{16*q}")
    A(f"ds_read_b128 {v(Kf[0],4)}, {v(vKa)}")
    A(f"ds_read_b128 {v(Kf[1],4)}, {v(vKa)} offset:{TSTR}")
    A(f"s_mov_b64 exec, {s(sMaskV,2)}")
    A(f"ds_read_b128 {v(Vf[0][0],4)}, {v(vVa)}")
    A(f"ds_read_b128 {v(Vf[0][1],4)}, {v(vVa)} offset:512")
    A("s_mov_b64 exec, -1")
    A(f"s_waitcnt lgkmcnt(4)")
    A(f"v_max_f32 {v(vt[2])}, {v(Sb[0])}, {v(Sb[0]+1)}")
    for q in range(2, NW):
        A(f"v_max_f32 {v(vt[2])}, {v(vt[2])}, {v(Sb[0]+q)}")
    A(f"v_mul_f32 {v(vt[2])}, {v(vt[2])}, {v(vt[3])}")
    A(f"v_sqrt_f32 {v(vt[2])}, {v(vt[2])}")
    A("s_nop 0")
    A(f"v_mul_f32 {v(vt[2])}, 0x3f808000, {v(vt[2])}")
    A(f"v_add_f32 {v(vt[2])}, 0x35800000, {v(vt[2])}")
    for r in range(16):
        A(f"v_sub_f32 {v(Cb+r)}, 0, {v(vt[2])}")
    A("s_waitcnt lgkmcnt(2)")
    A("s_nop 1")
    A(f"v_mfma_f32_32x32x16_bf16 {v(Sb[0],16)}, {v(Kf[0],4)}, {v(Qf,4)}, {v(Cb,16)}")

    stamp(2)
    for i in range(NI):
        A.c(f"-- tile {i}")
        cur, nxt = i & 1, (i + 1) & 1
        if (i + 2) % CPI == 0 and (i + 2) // CPI < 4:
            c = (i + 2) // CPI
            A(f"s_waitcnt vmcnt({ndma - 2*DPC*(c+1)})")
            A("s_barrier")
        A("s_waitcnt lgkmcnt(0)")
        if i + 1 < NI:
            A(f"v_mfma_f32_32x32x16_bf16 {v(Sb[nxt],16)}, {v(Kf[nxt],4)}, {v(Qf,4)}, {v(Cb,16)}")
        if i + 2 < NI:
            A(f"ds_read_b128 {v(Kf[cur],4)}, {v(vKa)} offset:{(i+2)*TSTR}")
        if i + 1 < NI:
            A(f"s_mov_b64 exec, {s(sMaskV,2)}")
            A(f"ds_read_b128 {v(Vf[nxt][0],4)}, {v(vVa)} offset:{(i+1)*TSTR}")
            A(f"ds_read_b128 {v(Vf[nxt][1],4)}, {v(vVa)} offset:{(i+1)*TSTR+512}")
            A("s_mov_b64 exec, -1")
        for r in range(16):
            A(f"v_exp_f32 {v(Sb[cur]+r)}, {v(Sb[cur]+r)}")
        for p in range(8):
            A(f"v_cvt_pk_bf16_f32 {v(Pb+p)}, {v(Sb[cur]+2*p)}, {v(Sb[cur]+2*p+1)}")
        A(f"v_mfma_f32_32x32x16_bf16 {v(Ob,16)}, {v(Vf[cur][0],4)}, {v(Pb,4)}, {v(Ob,16)}")
        A("s_nop 0")
        A(f"v_mfma_f32_32x32x16_bf16 {v(Ob,16)}, {v(Vf[cur][1],4)}, {v(Pb+4,4)}, {v(Ob,16)}")
    A.nop(16)

    stamp(3)
    lab_norm = A.newlabel("Lnorm")
    if split:
        lab_lo = A.newlabel("Lkh0")
        A(f"s_mul_i32 {s(sT[0])}, {s(s_qt)}, 2304")
        A(f"s_add_u32 {s(sT[0])}, {s(sT[0])}, {LDS_MRG}")
        A(f"v_lshlrev_b32 {v(vt[0])}, 2, {v(v_lane)}")
        A(f"v_add_u32 {v(vt[0])}, {s(sT[0])}, {v(vt[0])}")
        A(f"s_cmp_eq_u32 {s(s_kh)}, 0")
        A(f"s_cbranch_scc1 {lab_lo}")
        for r in range(9):
            A(f"ds_write_b32 {v(vt[0])}, {v(Ob+r)} offset:{256*r}")
        A("s_waitcnt lgkmcnt(0)")
        A("s_barrier")
        A("s_endpgm")
        A.label(lab_lo)
        A("s_barrier")
        for r in range(9):
            A(f"ds_read_b32 {v(Sb[0]+r)}, {v(vt[0])} offset:{256*r}")
        A("s_waitcnt lgkmcnt(0)")
        for r in range(9):
            A(f"v_add_f32 {v(Ob+r)}, {v(Ob+r)}, {v(Sb[0]+r)}")
    A(f"v_mov_b32 {v(vt[1])}, {v(Ob+8)}")
    A("s_nop 1")
    A(f"v_permlane32_swap_b32 {v(vt[1])}, {v(Ob+8)}")
    A("s_nop 1")
    A(f"v_cmp_nle_f32 vcc, 0x12800000, {v(vt[1])}")
    A(f"s_cbranch_vccz {lab_norm}")
    A.c("---- fallback: running-max online softmax")
    vM = vt[2]
    A(f"v_mov_b32 {v(vM)}, 0xff7fffff")
    for r in range(16):
        A(f"v_mov_b32 {v(Ob+r)}, 0")
    A(f"v_mov_b32 {v(vt[3])}, {v(v_l16)}")
    A(f"v_and_b32 {v(vt[4])}, 15, {v(v_lane)}")
    A(f"v_lshlrev_b32 {v(vt[5])}, 4, {v(v_hh)}")
    A(f"v_add_u32 {v(vt[4])}, {v(vt[4])}, {v(vt[5])}")
    A(f"v_lshlrev_b32 {v(vt[4])}, 4, {v(vt[4])}")
    A(f"v_add_u32 {v(vt[4])}, {LDS_V}, {v(vt[4])}")
    A(f"s_mov_b32 {s(sCnt)}, 0")
    lab_fb = A.newlabel("Lfb")
    A.label(lab_fb)
    A(f"ds_read_b128 {v(Kf[0],4)}, {v(vt[3])}")
    A(f"s_mov_b64 exec, {s(sMaskV,2)}")
    A(f"ds_read_b128 {v(Vf[0][0],4)}, {v(vt[4])}")
    A(f"ds_read_b128 {v(Vf[0][1],4)}, {v(vt[4])} offset:512")
    A("s_mov_b64 exec, -1")
    A("s_waitcnt lgkmcnt(0)")
    A("s_nop 1")
    A(f"v_mfma_f32_32x32x16_bf16 {v(Sb[0],16)}, {v(Kf[0],4)}, {v(Qf,4)}, 0")
    A.nop(16)
    A(f"v_max3_f32 {v(vt[0])}, {v(Sb[0])}, {v(Sb[0]+1)}, {v(Sb[0]+2)}")
    for r in range(3, 15, 2):
        A(f"v_max3_f32 {v(vt[0])}, {v(vt[0])}, {v(Sb[0]+r)}, {v(Sb[0]+r+1)}")
    A(f"v_max_f32 {v(vt[0])}, {v(vt[0])}, {v(Sb[0]+15)}")
    A(f"v_mov_b32 {v(vt[1])}, {v(vt[0])}")
    A("s_nop 1")
    A(f"v_permlane32_swap_b32 {v(vt[1])}, {v(vt[0])}")
    A("s_nop 1")
    A(f"v_max3_f32 {v(vt[0])}, {v(vt[0])}, {v(vt[1])}, {v(vM)}")
    A(f"v_sub_f32 {v(vt[1])}, {v(vM)}, {v(vt[0])}")
    A(f"v_exp_f32 {v(vt[1])}, {v(vt[1])}")
    A(f"v_mov_b32 {v(vM)}, {v(vt[0])}")
    for r in range(9):
        A(f"v_mul_f32 {v(Ob+r)}, {v(Ob+r)}, {v(vt[1])}")
    for r in range(16):
        A(f"v_sub_f32 {v(Sb[0]+r)}, {v(Sb[0]+r)}, {v(vM)}")
        A(f"v_exp_f32 {v(Sb[0]+r)}, {v(Sb[0]+r)}")
    A("s_nop 0")
    for p in range(8):
        A(f"v_cvt_pk_bf16_f32 {v(Pb+p)}, {v(Sb[0]+2*p)}, {v(Sb[0]+2*p+1)}")
    A("s_nop 1")
    A(f"v_mfma_f32_32x32x16_bf16 {v(Ob,16)}, {v(Vf[0][0],4)}, {v(Pb,4)}, {v(Ob,16)}")
    A(f"v_mfma_f32_32x32x16_bf16 {v(Ob,16)}, {v(Vf[0][1],4)}, {v(Pb+4,4)}, {v(Ob,16)}")
    A.nop(16)
    A(f"v_add_u32 {v(vt[3])}, 1024, {v(vt[3])}")
    A(f"v_add_u32 {v(vt[4])}, 1024, {v(vt[4])}")
    A(f"s_add_u32 {s(sCnt)}, {s(sCnt)}, 1")
    A(f"s_cmp_lt_u32 {s(sCnt)}, 64")
    A(f"s_cbranch_scc1 {lab_fb}")
    A(f"v_mov_b32 {v(vt[1])}, {v(Ob+8)}")
    A("s_nop 1")
    A(f"v_permlane32_swap_b32 {v(vt[1])}, {v(Ob+8)}")
    A("s_nop 1")
    A.label(lab_norm)
    A(f"v_rcp_f32 {v(vt[2])}, {v(vt[1])}")
    A("s_nop 0")
    for r in range(8):
        A(f"v_mul_f32 {v(Ob+r)}, {v(Ob+r)}, {v(vt[2])}")
    for p in range(4):
        A(f"v_cvt_pk_bf16_f32 {v(Pb+p)}, {v(Ob+2*p)}, {v(Ob+2*p+1)}")
    A(f"v_and_b32 {v(vt[0])}, 31, {v(v_lane)}")
    A(f"v_lshlrev_b32 {v(vt[0])}, 10, {v(vt[0])}")
    A(f"v_lshlrev_b32 {v(vt[3])}, 4, {v(v_hh)}")
    A(f"v_add_u32 {v(vt[0])}, {v(vt[0])}, {v(vt[3])}")
    A(f"s_lshl_b32 {s(sT[0])}, {s(s_qblk)}, 3")
    A(f"s_add_u32 {s(sT[0])}, {s(sT[0])}, {s(s_qt)}")
    A(f"s_lshl_b32 {s(sT[0])}, {s(sT[0])}, 15")
    A(f"s_lshl_b32 {s(sT[1])}, {s(s_head)}, 5")
    A(f"s_add_u32 {s(sT[0])}, {s(sT[0])}, {s(sT[1])}")
    A(f"buffer_store_dwordx4 {v(Pb,4)}, {v(vt[0])}, {s(srdO,4)}, {s(sT[0])} offen")
    if diag:
        stamp(4)
        stamp(6)
        A.add64(sPB, sPWS, WS_DIAG)
        A.srd(srdQ, sPB, 0x100000)
        A(f"s_lshl_b32 {s(sT[0])}, {s(s_idx)}, 4")
        A(f"s_add_u32 {s(sT[0])}, {s(sT[0])}, {s(s_wave)}")
        A(f"s_lshl_b32 {s(sT[0])}, {s(sT[0])}, 6")
        A(f"v_mov_b32 {v(vt[1])}, 0")
        A("s_mov_b64 exec, 1")
        for k in range(7):
            A(f"v_mov_b32 {v(vt[0])}, {s(sStamp[k])}")
            A(f"buffer_store_dword {v(vt[0])}, {v(vt[1])}, {s(srdQ,4)}, {s(sT[0])} offen offset:{4*k}")
    A("s_endpgm")
    return V.hi, S.hi
```

```python
from asmlib import *
from layout import *

RING = 4
SLOT = 16384
LDS_SCR = RING * SLOT
LDS_TOTAL = LDS_SCR + 64
WS_DIAG = 0x4000000


def emit_attn2(A, s_idx, max_vgpr=128, diag=False):
    NW = 8
    NI = 64
    CPI = 8
    NCH = 8
    NTW = 8

    V = Regs("v", 1, max_vgpr)
    S = Regs("s", 4, 96)
    sPWS = S.alloc(2, 2)
    sPB = S.alloc(2, 2)
    srdQ = S.alloc(4, 4)
    srdK = S.alloc(4, 4)
    srdV = S.alloc(4, 4)
    srdO = S.alloc(4, 4)
    s_wave = S.alloc()
    s_head = S.alloc()
    s_qblk = S.alloc()
    s_hoff = S.alloc()
    s_dsrc = S.alloc()
    s_dlds = S.alloc()
    sMaskV = S.alloc(2, 2)
    sT = [S.alloc() for _ in range(8)]
    sCnt = S.alloc()
    sStamp = [S.alloc(2, 2) for _ in range(7)] if diag else None

    def stamp(k):
        if diag:
            A(f"s_memtime {s(sStamp[k],2)}" if k < 5 else f"s_memrealtime {s(sStamp[k],2)}")
            A("s_waitcnt lgkmcnt(0)")

    Sb = [V.alloc(16, 4), V.alloc(16, 4)]
    Cb = V.alloc(16, 4)
    Ob = V.alloc(16, 4)
    Pb = V.alloc(8, 4)
    Qf = V.alloc(4, 4)
    Kf = [V.alloc(4, 4), V.alloc(4, 4)]
    Vf = [[V.alloc(4, 4), V.alloc(4, 4)], [V.alloc(4, 4), V.alloc(4, 4)]]
    vKa = V.alloc()
    vVa = V.alloc()
    v_lane = V.alloc()
    v_hh = V.alloc()
    vt = [V.alloc() for _ in range(8)]
    v_l16 = vKa

    A.c("==== attention role (ring staged, 8 waves)")
    stamp(0)
    stamp(5)
    A(f"s_load_dwordx2 {s(sPWS,2)}, s[0:1], {KA_WS}")
    A(f"v_lshrrev_b32 {v(vt[0])}, 6, v0")
    A(f"v_and_b32 {v(v_lane)}, 63, v0")
    A("s_nop 0")
    A(f"v_readfirstlane_b32 {s(s_wave)}, {v(vt[0])}")
    A(f"v_lshrrev_b32 {v(v_hh)}, 5, {v(v_lane)}")
    A(f"v_lshlrev_b32 {v(v_l16)}, 4, {v(v_lane)}")
    A(f"s_and_b32 {s(s_head)}, {s(s_idx)}, 31")
    A(f"s_lshr_b32 {s(s_qblk)}, {s(s_idx)}, 5")
    A(f"s_mov_b32 {s(sMaskV)}, 0x0000ffff")
    A(f"s_mov_b32 {s(sMaskV+1)}, 0x0000ffff")
    A("s_waitcnt lgkmcnt(0)")
    for srd, off in ((srdQ, WS_QP), (srdK, WS_KP), (srdV, WS_VP), (srdO, WS_O)):
        A.add64(sPB, sPWS, off)
        A.srd(srd, sPB, 0x200000)
    A(f"s_lshl_b32 {s(s_hoff)}, {s(s_head)}, 16")
    A(f"s_lshl_b32 {s(s_dlds)}, {s(s_wave)}, 10")
    A(f"s_add_u32 {s(s_dsrc)}, {s(s_dlds)}, {s(s_hoff)}")

    def dma_chunk(c):
        slot = (c % RING) * SLOT
        A(f"s_add_u32 m0, {s(s_dlds)}, {slot}")
        A(f"s_add_u32 {s(sT[4])}, {s(s_dsrc)}, {c*8192}")
        A(f"buffer_load_dwordx4 {v(v_l16)}, {s(srdK,4)}, {s(sT[4])} offen lds")
        A(f"s_add_u32 m0, {s(s_dlds)}, {slot + 8192}")
        A("s_nop 0")
        A(f"buffer_load_dwordx4 {v(v_l16)}, {s(srdV,4)}, {s(sT[4])} offen lds")

    Kn = [Sb[0] + 4 * j for j in range(4)] + [Sb[1] + 4 * j for j in range(4)]
    A(f"s_lshl_b32 {s(sT[0])}, {s(s_qblk)}, 3")
    A(f"s_add_u32 {s(sT[0])}, {s(sT[0])}, {s(s_wave)}")
    A(f"s_lshl_b32 {s(sT[0])}, {s(sT[0])}, 10")
    A(f"s_add_u32 {s(sT[0])}, {s(sT[0])}, {s(s_hoff)}")
    A(f"buffer_load_dwordx4 {v(Qf,4)}, {v(v_l16)}, {s(srdQ,4)}, {s(sT[0])} offen")
    A(f"s_lshl_b32 {s(sT[0])}, {s(s_wave)}, 13")
    A(f"s_add_u32 {s(sT[0])}, {s(sT[0])}, {s(s_hoff)}")
    for j in range(NTW):
        A(f"s_add_u32 {s(sT[1])}, {s(sT[0])}, {j*1024}")
        A(f"buffer_load_dwordx4 {v(Kn[j],4)}, {v(v_l16)}, {s(srdK,4)}, {s(sT[1])} offen")
    for c in range(RING - 1):
        dma_chunk(c)
    A(f"v_and_b32 {v(vt[0])}, 15, {v(v_lane)}")
    A(f"v_lshlrev_b32 {v(vt[1])}, 4, {v(v_hh)}")
    A(f"v_add_u32 {v(vt[0])}, {v(vt[0])}, {v(vt[1])}")
    A(f"v_lshlrev_b32 {v(vt[0])}, 4, {v(vt[0])}")
    A(f"v_add_u32 {v(vVa)}, 8192, {v(vt[0])}")
    A(f"v_and_b32 {v(vt[0])}, 31, {v(v_lane)}")
    A(f"v_cmp_eq_u32 vcc, 16, {v(vt[0])}")
    A(f"v_mov_b32 {v(vt[1])}, 0x3f803f80")
    A("s_nop 1")
    A(f"v_cndmask_b32 {v(vt[2])}, 0, {v(vt[1])}, vcc")
    for bsel in range(2):
        for m in range(2):
            for r in range(4):
                A(f"v_mov_b32 {v(Vf[bsel][m]+r)}, {v(vt[2])}")
    for r in range(16):
        A(f"v_mov_b32 {v(Ob+r)}, 0")

    def sq_sum(dst, src4):
        A(f"v_mov_b32 {v(dst)}, 0")
        for p in range(4):
            A(f"v_lshlrev_b32 {v(vt[6])}, 16, {v(src4+p)}")
            A(f"v_and_b32 {v(vt[7])}, 0xffff0000, {v(src4+p)}")
            A(f"v_fma_f32 {v(dst)}, {v(vt[6])}, {v(vt[6])}, {v(dst)}")
            A(f"v_fma_f32 {v(dst)}, {v(vt[7])}, {v(vt[7])}, {v(dst)}")

    def half_sum(x, t):
        A(f"v_mov_b32 {v(t)}, {v(x)}")
        A("s_nop 1")
        A(f"v_permlane32_swap_b32 {v(t)}, {v(x)}")
        A("s_nop 1")
        A(f"v_add_f32 {v(x)}, {v(x)}, {v(t)}")

    ndma0 = 2 * (RING - 1)
    A(f"s_waitcnt vmcnt({ndma0})")
    for j in range(NTW):
        sq_sum(vt[0], Kn[j])
        half_sum(vt[0], vt[1])
        if j == 0:
            A(f"v_mov_b32 {v(vt[2])}, {v(vt[0])}")
        else:
            A(f"v_max_f32 {v(vt[2])}, {v(vt[2])}, {v(vt[0])}")
    sq_sum(vt[3], Qf)
    half_sum(vt[3], vt[1])
    A("s_nop 1")
    A(f"v_max_f32_dpp {v(vt[0])}, {v(vt[2])}, {v(vt[2])} quad_perm:[1,0,3,2] row_mask:0xf bank_mask:0xf")
    A("s_nop 1")
    A(f"v_max_f32_dpp {v(vt[1])}, {v(vt[0])}, {v(vt[0])} quad_perm:[2,3,0,1] row_mask:0xf bank_mask:0xf")
    A("s_nop 1")
    A(f"v_max_f32_dpp {v(vt[0])}, {v(vt[1])}, {v(vt[1])} row_half_mirror row_mask:0xf bank_mask:0xf")
    A("s_nop 1")
    A(f"v_max_f32_dpp {v(vt[1])}, {v(vt[0])}, {v(vt[0])} row_mirror row_mask:0xf bank_mask:0xf")
    A("s_nop 1")
    A(f"v_readlane_b32 {s(sT[0])}, {v(vt[1])}, 0")
    A(f"v_readlane_b32 {s(sT[1])}, {v(vt[1])}, 16")
    A(f"v_readlane_b32 {s(sT[2])}, {v(vt[1])}, 32")
    A(f"v_readlane_b32 {s(sT[3])}, {v(vt[1])}, 48")
    A("s_nop 3")
    A(f"s_max_u32 {s(sT[0])}, {s(sT[0])}, {s(sT[1])}")
    A(f"s_max_u32 {s(sT[2])}, {s(sT[2])}, {s(sT[3])}")
    A(f"s_max_u32 {s(sT[0])}, {s(sT[0])}, {s(sT[2])}")
    A(f"v_mov_b32 {v(vt[0])}, {s(sT[0])}")
    A(f"s_lshl_b32 {s(sT[1])}, {s(s_wave)}, 2")
    A(f"s_add_u32 {s(sT[1])}, {s(sT[1])}, {LDS_SCR}")
    A(f"v_mov_b32 {v(vt[1])}, {s(sT[1])}")
    A(f"ds_write_b32 {v(vt[1])}, {v(vt[0])}")
    A(f"s_waitcnt vmcnt({ndma0 - 2}) lgkmcnt(0)")
    A("s_barrier")
    stamp(1)
    A(f"v_mov_b32 {v(vt[1])}, {LDS_SCR}")
    A(f"ds_read_b128 {v(Sb[0],4)}, {v(vt[1])}")
    A(f"ds_read_b128 {v(Sb[0]+4,4)}, {v(vt[1])} offset:16")
    A(f"ds_read_b128 {v(Kf[0],4)}, {v(vKa)}")
    A(f"ds_read_b128 {v(Kf[1],4)}, {v(vKa)} offset:1024")
    A(f"s_mov_b64 exec, {s(sMaskV,2)}")
    A(f"ds_read_b128 {v(Vf[0][0],4)}, {v(vVa)}")
    A(f"ds_read_b128 {v(Vf[0][1],4)}, {v(vVa)} offset:512")
    A("s_mov_b64 exec, -1")
    A("s_waitcnt lgkmcnt(4)")
    A(f"v_max_f32 {v(vt[2])}, {v(Sb[0])}, {v(Sb[0]+1)}")
    for q in range(2, NW):
        A(f"v_max_f32 {v(vt[2])}, {v(vt[2])}, {v(Sb[0]+q)}")
    A(f"v_mul_f32 {v(vt[2])}, {v(vt[2])}, {v(vt[3])}")
    A(f"v_sqrt_f32 {v(vt[2])}, {v(vt[2])}")
    A("s_nop 0")
    A(f"v_mul_f32 {v(vt[2])}, 0x3f808000, {v(vt[2])}")
    A(f"v_add_f32 {v(vt[2])}, 0x35800000, {v(vt[2])}")
    for r in range(16):
        A(f"v_sub_f32 {v(Cb+r)}, 0, {v(vt[2])}")
    A("s_waitcnt lgkmcnt(2)")
    A("s_nop 1")
    A(f"v_mfma_f32_32x32x16_bf16 {v(Sb[0],16)}, {v(Kf[0],4)}, {v(Qf,4)}, {v(Cb,16)}")
    stamp(2)

    def koff(t):
        return ((t // CPI) % RING) * SLOT + (t % CPI) * 1024

    for i in range(NI):
        A.c(f"-- tile {i}")
        cur, nxt = i & 1, (i + 1) & 1
        if (i + 2) % CPI == 0 and (i + 2) // CPI < NCH:
            c = (i + 2) // CPI
            A(f"s_waitcnt vmcnt({2 if c + 1 < NCH else 0})")
            A("s_barrier")
            if c + 2 < NCH:
                dma_chunk(c + 2)
        A("s_waitcnt lgkmcnt(0)")
        if i + 1 < NI:
            A(f"v_mfma_f32_32x32x16_bf16 {v(Sb[nxt],16)}, {v(Kf[nxt],4)}, {v(Qf,4)}, {v(Cb,16)}")
        if i + 2 < NI:
            A(f"ds_read_b128 {v(Kf[cur],4)}, {v(vKa)} offset:{koff(i+2)}")
        if i + 1 < NI:
            A(f"s_mov_b64 exec, {s(sMaskV,2)}")
            A(f"ds_read_b128 {v(Vf[nxt][0],4)}, {v(vVa)} offset:{koff(i+1)}")
            A(f"ds_read_b128 {v(Vf[nxt][1],4)}, {v(vVa)} offset:{koff(i+1)+512}")
            A("s_mov_b64 exec, -1")
        for r in range(16):
            A(f"v_exp_f32 {v(Sb[cur]+r)}, {v(Sb[cur]+r)}")
        for p in range(8):
            A(f"v_cvt_pk_bf16_f32 {v(Pb+p)}, {v(Sb[cur]+2*p)}, {v(Sb[cur]+2*p+1)}")
        A(f"v_mfma_f32_32x32x16_bf16 {v(Ob,16)}, {v(Vf[cur][0],4)}, {v(Pb,4)}, {v(Ob,16)}")
        A("s_nop 0")
        A(f"v_mfma_f32_32x32x16_bf16 {v(Ob,16)}, {v(Vf[cur][1],4)}, {v(Pb+4,4)}, {v(Ob,16)}")
    A.nop(16)
    stamp(3)
    lab_norm = A.newlabel("Lnorm")
    A(f"v_mov_b32 {v(vt[1])}, {v(Ob+8)}")
    A("s_nop 1")
    A(f"v_permlane32_swap_b32 {v(vt[1])}, {v(Ob+8)}")
    A("s_nop 1")
    A(f"v_cmp_nle_f32 vcc, 0x12800000, {v(vt[1])}")
    A(f"s_cbranch_vccz {lab_norm}")
    A.c("---- fallback: running-max online softmax")
    vM = vt[2]
    A(f"v_mov_b32 {v(vM)}, 0xff7fffff")
    for r in range(16):
        A(f"v_mov_b32 {v(Ob+r)}, 0")
    A(f"v_subrev_u32 {v(vt[4])}, 8192, {v(vVa)}")
    A(f"s_mov_b32 {s(sCnt)}, 0")
    A(f"s_mov_b32 {s(sT[5])}, {s(s_hoff)}")
    lab_fb = A.newlabel("Lfb")
    A.label(lab_fb)
    A(f"buffer_load_dwordx4 {v(Kf[0],4)}, {v(v_l16)}, {s(srdK,4)}, {s(sT[5])} offen")
    A(f"s_mov_b64 exec, {s(sMaskV,2)}")
    A(f"buffer_load_dwordx4 {v(Vf[0][0],4)}, {v(vt[4])}, {s(srdV,4)}, {s(sT[5])} offen")
    A(f"buffer_load_dwordx4 {v(Vf[0][1],4)}, {v(vt[4])}, {s(srdV,4)}, {s(sT[5])} offen offset:512")
    A("s_mov_b64 exec, -1")
    A("s_waitcnt vmcnt(0)")
    A("s_nop 1")
    A(f"v_mfma_f32_32x32x16_bf16 {v(Sb[0],16)}, {v(Kf[0],4)}, {v(Qf,4)}, 0")
    A.nop(16)
    A(f"v_max3_f32 {v(vt[0])}, {v(Sb[0])}, {v(Sb[0]+1)}, {v(Sb[0]+2)}")
    for r in range(3, 15, 2):
        A(f"v_max3_f32 {v(vt[0])}, {v(vt[0])}, {v(Sb[0]+r)}, {v(Sb[0]+r+1)}")
    A(f"v_max_f32 {v(vt[0])}, {v(vt[0])}, {v(Sb[0]+15)}")
    A(f"v_mov_b32 {v(vt[1])}, {v(vt[0])}")
    A("s_nop 1")
    A(f"v_permlane32_swap_b32 {v(vt[1])}, {v(vt[0])}")
    A("s_nop 1")
    A(f"v_max3_f32 {v(vt[0])}, {v(vt[0])}, {v(vt[1])}, {v(vM)}")
    A(f"v_sub_f32 {v(vt[1])}, {v(vM)}, {v(vt[0])}")
    A(f"v_exp_f32 {v(vt[1])}, {v(vt[1])}")
    A(f"v_mov_b32 {v(vM)}, {v(vt[0])}")
    for r in range(9):
        A(f"v_mul_f32 {v(Ob+r)}, {v(Ob+r)}, {v(vt[1])}")
    for r in range(16):
        A(f"v_sub_f32 {v(Sb[0]+r)}, {v(Sb[0]+r)}, {v(vM)}")
        A(f"v_exp_f32 {v(Sb[0]+r)}, {v(Sb[0]+r)}")
    A("s_nop 0")
    for p in range(8):
        A(f"v_cvt_pk_bf16_f32 {v(Pb+p)}, {v(Sb[0]+2*p)}, {v(Sb[0]+2*p+1)}")
    A("s_nop 1")
    A(f"v_mfma_f32_32x32x16_bf16 {v(Ob,16)}, {v(Vf[0][0],4)}, {v(Pb,4)}, {v(Ob,16)}")
    A(f"v_mfma_f32_32x32x16_bf16 {v(Ob,16)}, {v(Vf[0][1],4)}, {v(Pb+4,4)}, {v(Ob,16)}")
    A.nop(16)
    A(f"s_add_u32 {s(sT[5])}, {s(sT[5])}, 1024")
    A(f"s_add_u32 {s(sCnt)}, {s(sCnt)}, 1")
    A(f"s_cmp_lt_u32 {s(sCnt)}, 64")
    A(f"s_cbranch_scc1 {lab_fb}")
    A(f"v_mov_b32 {v(vt[1])}, {v(Ob+8)}")
    A("s_nop 1")
    A(f"v_permlane32_swap_b32 {v(vt[1])}, {v(Ob+8)}")
    A("s_nop 1")
    A.label(lab_norm)
    A(f"v_rcp_f32 {v(vt[2])}, {v(vt[1])}")
    A("s_nop 0")
    for r in range(8):
        A(f"v_mul_f32 {v(Ob+r)}, {v(Ob+r)}, {v(vt[2])}")
    for p in range(4):
        A(f"v_cvt_pk_bf16_f32 {v(Pb+p)}, {v(Ob+2*p)}, {v(Ob+2*p+1)}")
    A(f"v_and_b32 {v(vt[0])}, 31, {v(v_lane)}")
    A(f"v_lshlrev_b32 {v(vt[0])}, 10, {v(vt[0])}")
    A(f"v_lshlrev_b32 {v(vt[3])}, 4, {v(v_hh)}")
    A(f"v_add_u32 {v(vt[0])}, {v(vt[0])}, {v(vt[3])}")
    A(f"s_lshl_b32 {s(sT[0])}, {s(s_qblk)}, 3")
    A(f"s_add_u32 {s(sT[0])}, {s(sT[0])}, {s(s_wave)}")
    A(f"s_lshl_b32 {s(sT[0])}, {s(sT[0])}, 15")
    A(f"s_lshl_b32 {s(sT[1])}, {s(s_head)}, 5")
    A(f"s_add_u32 {s(sT[0])}, {s(sT[0])}, {s(sT[1])}")
    A(f"buffer_store_dwordx4 {v(Pb,4)}, {v(vt[0])}, {s(srdO,4)}, {s(sT[0])} offen")
    if diag:
        stamp(4)
        stamp(6)
        A.add64(sPB, sPWS, WS_DIAG)
        A.srd(srdQ, sPB, 0x100000)
        A(f"s_lshl_b32 {s(sT[0])}, {s(s_idx)}, 4")
        A(f"s_add_u32 {s(sT[0])}, {s(sT[0])}, {s(s_wave)}")
        A(f"s_lshl_b32 {s(sT[0])}, {s(sT[0])}, 6")
        A(f"v_mov_b32 {v(vt[1])}, 0")
        A("s_mov_b64 exec, 1")
        for k in range(7):
            A(f"v_mov_b32 {v(vt[0])}, {s(sStamp[k])}")
            A(f"buffer_store_dword {v(vt[0])}, {v(vt[1])}, {s(srdQ,4)}, {s(sT[0])} offen offset:{4*k}")
    A("s_endpgm")
    return V.hi, S.hi
```

```python
import struct
from asmlib import *
from layout import *

NST_DEFAULT = 3
BK = 64


def f32bits(x):
    return struct.unpack("<I", struct.pack("<f", x))[0]


class Cfg:
    def __init__(self, **kw):
        self.__dict__.update(kw)


def w_const(mode, t, a2):
    if mode == "id":
        return 16 * t + 4 * a2
    if mode == "operm":
        return 16 * t + 8 * a2
    if mode == "hperm":
        return 32 * (t >> 1) + 4 * (t & 1) + 8 * a2
    raise ValueError(mode)


def w_hhcoef(mode):
    return {"id": 8, "operm": 4, "hperm": 16}[mode]


def emit_gemm(A, cfg, s_idx):
    WM, WN, WK, TM, TN = cfg.WM, cfg.WN, cfg.WK, cfg.TM, cfg.TN
    BM, BN = WM * TM * 32, WN * TN * 32
    RSW = BN * 2
    XB = BM * 128
    WB = 64 * RSW
    SST = XB + WB
    nX, nW = BM // 64, BN // 64
    assert BM % 64 == 0 and BN % 64 == 0 and RSW in (128, 256)
    assert WM * WN * WK == 8
    KS = cfg.K // BK
    NST = getattr(cfg, 'NST', NST_DEFAULT)
    NT = 4 // WK
    mode = cfg.wperm
    nlds = TM + 2 * TN
    ndma = nX + nW

    V = Regs("v", 1, cfg.max_vgpr)
    S = Regs("s", 4, 96)

    sPX = S.alloc(2, 2)
    sPW = S.alloc(2, 2)
    sPWS = S.alloc(2, 2)
    sPB = S.alloc(2, 2)
    srdX = S.alloc(4, 4)
    srdW = S.alloc(4, 4)
    srdD = S.alloc(4, 4)
    srdB = S.alloc(4, 4)
    s_wave = S.alloc()
    s_wm = S.alloc()
    s_wn = S.alloc()
    s_wk = S.alloc()
    s_mblk = S.alloc()
    s_nblk = S.alloc()
    sXo = [S.alloc() for _ in range(nX)]
    sWo = [S.alloc() for _ in range(nW)]
    sXl = S.alloc()
    sWl = S.alloc()
    sT = [S.alloc() for _ in range(6)]
    diag = getattr(cfg, "diag", None)
    sStamp = [S.alloc(2, 2) for _ in range(7)] if diag is not None else None

    def stamp(k):
        if diag is not None:
            A(f"s_memtime {s(sStamp[k],2)}" if k < 5 else f"s_memrealtime {s(sStamp[k],2)}")
            A("s_waitcnt lgkmcnt(0)")
    cfg.sregs = dict(sPWS=sPWS, srdD=srdD, srdB=srdB, s_wave=s_wave, s_wm=s_wm, s_wn=s_wn, s_wk=s_wk,
                     s_mblk=s_mblk, s_nblk=s_nblk, sT=sT, sPB=sPB)

    acc = [[V.alloc(16, 4) for b in range(TM)] for a_ in range(TN)]
    Xf = [[V.alloc(4, 4) for b in range(TM)] for p in range(2)]
    Wf = [[V.alloc(4, 4) for a_ in range(TN)] for p in range(2)]
    vXa = [V.alloc() for _ in range(NT)]
    vWa = [V.alloc() for _ in range(TN)]
    vXd = [V.alloc() for _ in range(nX)]
    vWd = V.alloc()
    v_lane = V.alloc()
    v_hh = V.alloc()
    v_tl = V.alloc()
    vt = [V.alloc() for _ in range(6)]
    cfg.vregs = dict(acc=acc, v_lane=v_lane, v_hh=v_hh, v_tl=v_tl, vt=vt, Xf=Xf, Wf=Wf)
    cfg.V, cfg.S = V, S

    A.c(f"==== GEMM role {cfg.name}: BM={BM} BN={BN} WM={WM} WN={WN} WK={WK} K={cfg.K} orient={cfg.orient}")
    stamp(0)
    stamp(5)
    if cfg.x_src[0] == "karg":
        A(f"s_load_dwordx2 {s(sPX,2)}, s[0:1], {cfg.x_src[1]}")
    A(f"s_load_dwordx2 {s(sPW,2)}, s[0:1], {cfg.w_karg}")
    A(f"s_load_dwordx2 {s(sPWS,2)}, s[0:1], {KA_WS}")
    if cfg.bias_karg is not None:
        A(f"s_load_dwordx2 {s(sPB,2)}, s[0:1], {cfg.bias_karg}")
    A(f"v_lshrrev_b32 {v(vt[0])}, 6, v0")
    A(f"v_and_b32 {v(v_lane)}, 63, v0")
    A("s_nop 0")
    A(f"v_readfirstlane_b32 {s(s_wave)}, {v(vt[0])}")
    A(f"v_lshrrev_b32 {v(v_hh)}, 5, {v(v_lane)}")
    A(f"v_and_b32 {v(v_tl)}, 31, {v(v_lane)}")
    A(f"s_and_b32 {s(s_mblk)}, {s(s_idx)}, {cfg.nmblk-1}")
    A(f"s_lshr_b32 {s(s_nblk)}, {s(s_idx)}, {cfg.nmblk.bit_length()-1}")
    A(f"s_and_b32 {s(s_wk)}, {s(s_wave)}, {WK-1}")
    A(f"s_lshr_b32 {s(sT[0])}, {s(s_wave)}, {WK.bit_length()-1}")
    A(f"s_and_b32 {s(s_wm)}, {s(sT[0])}, {WM-1}")
    A(f"s_lshr_b32 {s(s_wn)}, {s(sT[0])}, {WM.bit_length()-1}")
    A("s_waitcnt lgkmcnt(0)")
    if cfg.x_src[0] == "karg":
        A.srd(srdX, sPX, cfg.x_size)
    else:
        A.add64(sPX, sPWS, cfg.x_src[1])
        A.srd(srdX, sPX, cfg.x_size)
    A(f"s_mul_i32 {s(sT[0])}, {s(s_nblk)}, {BN*2}")
    A(f"s_add_u32 {s(sT[0])}, {s(sT[0])}, {cfg.w_col0*2}")
    A(f"s_add_u32 {s(sPW)}, {s(sPW)}, {s(sT[0])}")
    A(f"s_addc_u32 {s(sPW+1)}, {s(sPW+1)}, 0")
    A(f"s_sub_u32 {s(sT[1])}, {cfg.w_size}, {s(sT[0])}")
    A(f"s_mov_b32 {s(srdW)}, {s(sPW)}")
    A(f"s_mov_b32 {s(srdW+1)}, {s(sPW+1)}")
    A(f"s_mov_b32 {s(srdW+2)}, {s(sT[1])}")
    A(f"s_mov_b32 {s(srdW+3)}, 0x00020000")
    A.add64(sT[0], sPWS, cfg.d_off) if cfg.d_off is not None else None
    if cfg.d_off is not None:
        A.srd(srdD, sT[0], cfg.d_size)
    else:
        A(f"s_load_dwordx2 {s(sT[0],2)}, s[0:1], {KA_OUT}")
        A("s_waitcnt lgkmcnt(0)")
        A.srd(srdD, sT[0], cfg.d_size)
    if cfg.bias_karg is not None:
        A.srd(srdB, sPB, cfg.bias_size)

    XS, WS_ = cfg.x_stride, cfg.w_stride
    A(f"v_lshrrev_b32 {v(vt[0])}, 3, {v(v_lane)}")
    A(f"v_and_b32 {v(vt[1])}, 7, {v(v_lane)}")
    A(f"s_mul_i32 {s(sT[0])}, {s(s_wave)}, {8*nX}")
    A(f"s_mov_b32 {s(sT[1])}, {XS}")
    for u in range(nX):
        A(f"v_add_u32 {v(vt[2])}, {s(sT[0])}, {v(vt[0])}")
        if u:
            A(f"v_add_u32 {v(vt[2])}, {8*u}, {v(vt[2])}")
        A(f"v_lshrrev_b32 {v(vt[2])}, 1, {v(vt[2])}")
        A(f"v_and_b32 {v(vt[2])}, 7, {v(vt[2])}")
        A(f"v_xor_b32 {v(vt[2])}, {v(vt[2])}, {v(vt[1])}")
        A(f"v_lshlrev_b32 {v(vt[2])}, 4, {v(vt[2])}")
        A(f"v_mul_lo_u32 {v(vt[3])}, {v(vt[0])}, {s(sT[1])}")
        A(f"v_add_u32 {v(vXd[u])}, {v(vt[2])}, {v(vt[3])}")
    A(f"s_mul_i32 {s(sT[2])}, {s(s_mblk)}, {BM}")
    A(f"s_add_u32 {s(sT[2])}, {s(sT[2])}, {s(sT[0])}")
    for u in range(nX):
        A(f"s_add_u32 {s(sT[3])}, {s(sT[2])}, {8*u}")
        A(f"s_mul_i32 {s(sXo[u])}, {s(sT[3])}, {XS}")
        if cfg.x_col0:
            A(f"s_add_u32 {s(sXo[u])}, {s(sXo[u])}, {cfg.x_col0*2}")
    A(f"s_mul_i32 {s(sXl)}, {s(s_wave)}, {nX*1024}")
    SPR = RSW // 16
    RPI = 1024 // RSW
    sh = SPR.bit_length() - 1
    A(f"v_lshrrev_b32 {v(vt[0])}, {sh}, {v(v_lane)}")
    A(f"v_and_b32 {v(vt[1])}, {SPR-1}, {v(v_lane)}")
    if RSW == 256:
        A(f"v_and_b32 {v(vt[2])}, 3, {v(vt[0])}")
        A(f"v_lshlrev_b32 {v(vt[2])}, 2, {v(vt[2])}")
    else:
        A(f"v_lshrrev_b32 {v(vt[2])}, 1, {v(vt[0])}")
        A(f"v_and_b32 {v(vt[2])}, 1, {v(vt[2])}")
        A(f"v_lshlrev_b32 {v(vt[2])}, 2, {v(vt[2])}")
    A(f"v_xor_b32 {v(vt[1])}, {v(vt[1])}, {v(vt[2])}")
    A(f"v_lshlrev_b32 {v(vt[1])}, 4, {v(vt[1])}")
    A(f"s_mov_b32 {s(sT[1])}, {WS_}")
    A(f"v_mul_lo_u32 {v(vt[3])}, {v(vt[0])}, {s(sT[1])}")
    A(f"v_add_u32 {v(vWd)}, {v(vt[1])}, {v(vt[3])}")
    for u in range(nW):
        A(f"s_mul_i32 {s(sT[2])}, {s(s_wave)}, {nW*RPI}")
        A(f"s_add_u32 {s(sT[2])}, {s(sT[2])}, {u*RPI}")
        A(f"s_mul_i32 {s(sWo[u])}, {s(sT[2])}, {WS_}")
    A(f"s_mul_i32 {s(sWl)}, {s(s_wave)}, {nW*1024}")
    A(f"s_add_u32 {s(sWl)}, {s(sWl)}, {XB}")

    def dma_stage(st):
        for u in range(nX):
            A(f"s_add_u32 m0, {s(sXl)}, {st*SST + u*1024}")
            A(f"s_nop 0")
            A(f"buffer_load_dwordx4 {v(vXd[u])}, {s(srdX,4)}, {s(sXo[u])} offen lds")
            A(f"s_add_u32 {s(sXo[u])}, {s(sXo[u])}, 128")
        for u in range(nW):
            A(f"s_add_u32 m0, {s(sWl)}, {st*SST + u*1024}")
            A(f"s_nop 0")
            A(f"buffer_load_dwordx4 {v(vWd)}, {s(srdW,4)}, {s(sWo[u])} offen lds")
            A(f"s_add_u32 {s(sWo[u])}, {s(sWo[u])}, {64*WS_}")

    nbias_loads = 0
    if cfg.bias_karg is not None:
        A(f"v_lshlrev_b32 {v(vt[4])}, 3, {v(v_hh)}")
        A(f"s_mul_i32 {s(sT[4])}, {s(s_nblk)}, {BN*2}")
        A(f"s_mul_i32 {s(sT[5])}, {s(s_wn)}, {TN*64}")
        A(f"s_add_u32 {s(sT[4])}, {s(sT[4])}, {s(sT[5])}")
        btmp = [Xf[0][0], Xf[1][0]] if TM >= 1 else None
        for a_ in range(TN):
            for i in range(4):
                reg = (Wf[0][a_] + 2 * i) if i < 2 else (Wf[1][a_] + 2 * (i - 2))
                A(f"buffer_load_dwordx2 {v(reg,2)}, {v(vt[4])}, {s(srdB,4)}, {s(sT[4])} offen offset:{(32*a_+8*i)*2}")
                nbias_loads += 1
    npre = min(NST - 1, KS)
    for st0 in range(npre):
        dma_stage(st0)

    A(f"s_mul_i32 {s(sT[0])}, {s(s_wm)}, {TM*32*128}")
    A(f"v_lshlrev_b32 {v(vt[0])}, 7, {v(v_tl)}")
    A(f"v_add_u32 {v(vt[0])}, {s(sT[0])}, {v(vt[0])}")
    A(f"v_lshrrev_b32 {v(vt[1])}, 1, {v(v_tl)}")
    A(f"v_and_b32 {v(vt[1])}, 7, {v(vt[1])}")
    A(f"s_lshl_b32 {s(sT[1])}, {s(s_wk)}, 1")
    A(f"v_add_u32 {v(vt[2])}, {s(sT[1])}, {v(v_hh)}")
    for tt in range(NT):
        A(f"v_add_u32 {v(vt[3])}, {2*WK*tt}, {v(vt[2])}")
        A(f"v_xor_b32 {v(vt[3])}, {v(vt[3])}, {v(vt[1])}")
        A(f"v_lshlrev_b32 {v(vt[3])}, 4, {v(vt[3])}")
        A(f"v_add_u32 {v(vXa[tt])}, {v(vt[0])}, {v(vt[3])}")
    A(f"v_and_b32 {v(vt[0])}, 15, {v(v_lane)}")
    A(f"v_lshrrev_b32 {v(vt[0])}, 2, {v(vt[0])}")
    A(f"v_mul_u32_u24 {v(vt[1])}, {w_hhcoef(mode)}, {v(v_hh)}")
    A(f"v_add_u32 {v(vt[1])}, {v(vt[1])}, {v(vt[0])}")
    if WK > 1:
        for tt in range(NT):
            for wk in range(WK):
                for a2 in range(2):
                    assert w_const(mode, WK * tt + wk, a2) == w_const(mode, WK * tt, a2) + w_const(mode, wk, 0)
        A(f"s_mov_b32 {s(sT[0])}, 0")
        for wk in range(1, WK):
            A(f"s_cmp_eq_u32 {s(s_wk)}, {wk}")
            A(f"s_cselect_b32 {s(sT[0])}, {w_const(mode, wk, 0)}, {s(sT[0])}")
        A(f"v_add_u32 {v(vt[1])}, {s(sT[0])}, {v(vt[1])}")
    A(f"v_mul_u32_u24 {v(vt[1])}, {RSW}, {v(vt[1])}")
    if RSW == 256:
        A(f"v_lshlrev_b32 {v(vt[2])}, 2, {v(vt[0])}")
    else:
        A(f"v_lshrrev_b32 {v(vt[2])}, 1, {v(vt[0])}")
        A(f"v_lshlrev_b32 {v(vt[2])}, 2, {v(vt[2])}")
    A(f"v_lshrrev_b32 {v(vt[3])}, 4, {v(v_lane)}")
    A(f"v_and_b32 {v(vt[3])}, 1, {v(vt[3])}")
    A(f"v_lshlrev_b32 {v(vt[3])}, 1, {v(vt[3])}")
    A(f"v_and_b32 {v(vt[4])}, 3, {v(v_lane)}")
    A(f"v_lshrrev_b32 {v(vt[5])}, 1, {v(vt[4])}")
    A(f"v_add_u32 {v(vt[3])}, {v(vt[3])}, {v(vt[5])}")
    A(f"s_mul_i32 {s(sT[0])}, {s(s_wn)}, {TN*4}")
    A(f"v_add_u32 {v(vt[3])}, {s(sT[0])}, {v(vt[3])}")
    A(f"v_and_b32 {v(vt[4])}, 1, {v(vt[4])}")
    A(f"v_lshlrev_b32 {v(vt[4])}, 3, {v(vt[4])}")
    A(f"v_add_u32 {v(vt[4])}, {v(vt[4])}, {v(vt[1])}")
    A(f"v_add_u32 {v(vt[4])}, {XB}, {v(vt[4])}")
    for a_ in range(TN):
        A(f"v_add_u32 {v(vt[5])}, {4*a_}, {v(vt[3])}")
        A(f"v_xor_b32 {v(vt[5])}, {v(vt[5])}, {v(vt[2])}")
        A(f"v_lshlrev_b32 {v(vt[5])}, 4, {v(vt[5])}")
        A(f"v_add_u32 {v(vWa[a_])}, {v(vt[4])}, {v(vt[5])}")

    if cfg.bias_karg is not None:
        A(f"s_waitcnt vmcnt({npre*ndma})")
        if WK > 1:
            lab = A.newlabel("Lz")
            A(f"s_cmp_eq_u32 {s(s_wk)}, 0")
            A(f"s_cbranch_scc1 {lab}")
            for a_ in range(TN):
                for i in range(4):
                    reg = (Wf[0][a_] + 2 * i) if i < 2 else (Wf[1][a_] + 2 * (i - 2))
                    A(f"v_mov_b32 {v(reg)}, 0")
                    A(f"v_mov_b32 {v(reg+1)}, 0")
            A.label(lab)
        for a_ in range(TN):
            for b in range(TM):
                for i in range(4):
                    reg = (Wf[0][a_] + 2 * i) if i < 2 else (Wf[1][a_] + 2 * (i - 2))
                    A(f"v_lshlrev_b32 {v(acc[a_][b]+4*i)}, 16, {v(reg)}")
                    A(f"v_and_b32 {v(acc[a_][b]+4*i+1)}, 0xffff0000, {v(reg)}")
                    A(f"v_lshlrev_b32 {v(acc[a_][b]+4*i+2)}, 16, {v(reg+1)}")
                    A(f"v_and_b32 {v(acc[a_][b]+4*i+3)}, 0xffff0000, {v(reg+1)}")
    else:
        for a_ in range(TN):
            for b in range(TM):
                for r in range(16):
                    A(f"v_mov_b32 {v(acc[a_][b]+r)}, 0")

    cur_base = [0]

    def set_stage(st):
        d = st * SST - cur_base[0]
        if d == 0:
            return
        for r in vXa + vWa:
            if d > 0:
                A(f"v_add_u32 {v(r)}, {d}, {v(r)}")
            else:
                A(f"v_subrev_u32 {v(r)}, {-d}, {v(r)}")
        cur_base[0] = st * SST

    def read_frags(par, tt):
        tbase = WK * tt
        for b in range(TM):
            A(f"ds_read_b128 {v(Xf[par][b],4)}, {v(vXa[tt])} offset:{b*4096}")
        for a_ in range(TN):
            for a2 in range(2):
                off = w_const(mode, tbase, a2) * RSW
                A(f"ds_read_b64_tr_b16 {v(Wf[par][a_]+2*a2,2)}, {v(vWa[a_])} offset:{off}")

    def mfmas(par):
        for a_ in range(TN):
            for b in range(TM):
                if cfg.orient == "T":
                    A(f"v_mfma_f32_32x32x16_bf16 {v(acc[a_][b],16)}, {v(Wf[par][a_],4)}, {v(Xf[par][b],4)}, {v(acc[a_][b],16)}")
                else:
                    A(f"v_mfma_f32_32x32x16_bf16 {v(acc[a_][b],16)}, {v(Xf[par][b],4)}, {v(Wf[par][a_],4)}, {v(acc[a_][b],16)}")

    A.c("---- wait for stage 0")
    A(f"s_waitcnt vmcnt({(npre-1)*ndma})")
    A("s_barrier")
    stamp(1)
    par = 0
    read_frags(par, 0)
    for st_ in range(KS):
        A.c(f"---- k-step {st_}")
        for tt in range(NT):
            last_tt = tt == NT - 1
            sync_here = (tt == (NT - 1) // 2 if NT > 1 else True)
            if sync_here and st_ + 1 < KS:
                inflight_after = min(st_ + NST - 2, KS - 1) - (st_ + 1)
                A(f"s_waitcnt vmcnt({inflight_after*ndma})")
                A("s_barrier")
                if st_ + NST - 1 < KS:
                    dma_stage((st_ + NST - 1) % NST)
            npar = par ^ 1
            issued = False
            if not last_tt:
                read_frags(npar, tt + 1)
                issued = True
            elif st_ + 1 < KS:
                set_stage((st_ + 1) % NST)
                read_frags(npar, 0)
                issued = True
            A(f"s_waitcnt lgkmcnt({nlds if issued else 0})")
            mfmas(par)
            par = npar
    A.nop(16)
    stamp(2)

    if WK > 1:
        tile_bytes = TM * TN * 4096
        A("s_barrier")
        lab_red = A.newlabel("Lred")
        lab_done = A.newlabel("Lwdone")
        A(f"s_lshr_b32 {s(sT[0])}, {s(s_wave)}, {WK.bit_length()-1}")
        A(f"s_mul_i32 {s(sT[0])}, {s(sT[0])}, {(WK-1)*tile_bytes}")
        A(f"v_lshlrev_b32 {v(vt[0])}, 4, {v(v_lane)}")
        A(f"v_add_u32 {v(vt[0])}, {s(sT[0])}, {v(vt[0])}")
        A(f"s_cmp_eq_u32 {s(s_wk)}, 0")
        A(f"s_cbranch_scc1 {lab_red}")
        A(f"s_sub_u32 {s(sT[1])}, {s(s_wk)}, 1")
        A(f"s_mul_i32 {s(sT[1])}, {s(sT[1])}, {tile_bytes}")
        A(f"v_add_u32 {v(vt[0])}, {s(sT[1])}, {v(vt[0])}")
        k = 0
        for a_ in range(TN):
            for b in range(TM):
                for q in range(4):
                    A(f"ds_write_b128 {v(vt[0])}, {v(acc[a_][b]+4*q,4)} offset:{k*1024}")
                    k += 1
        A("s_waitcnt lgkmcnt(0)")
        A("s_barrier")
        A("s_endpgm")
        A.label(lab_red)
        A("s_barrier")
        tmp = Xf[0][0]
        for j in range(WK - 1):
            k = 0
            for a_ in range(TN):
                for b in range(TM):
                    for q in range(4):
                        A(f"ds_read_b128 {v(tmp + 4*(k&1),4)}, {v(vt[0])} offset:{j*tile_bytes + k*1024}")
                        A("s_waitcnt lgkmcnt(0)")
                        for e in range(4):
                            A(f"v_add_f32 {v(acc[a_][b]+4*q+e)}, {v(acc[a_][b]+4*q+e)}, {v(tmp+4*(k&1)+e)}")
                        k += 1
    cfg.BM, cfg.BN = BM, BN
    cfg.lds_bytes = NST * SST
    stamp(3)
    cfg.epilogue(A, cfg)
    if diag is not None:
        stamp(4)
        stamp(6)
        A.add64(sPX, sPWS, diag)
        A.srd(srdX, sPX, 0x100000)
        A(f"s_lshl_b32 {s(sT[0])}, s2, 3")
        A(f"s_add_u32 {s(sT[0])}, {s(sT[0])}, {s(s_wave)}")
        A(f"s_lshl_b32 {s(sT[0])}, {s(sT[0])}, 6")
        A(f"v_mov_b32 {v(vt[1])}, 0")
        A("s_mov_b64 exec, 1")
        for k in range(7):
            A(f"v_mov_b32 {v(vt[0])}, {s(sStamp[k])}")
            A(f"buffer_store_dword {v(vt[0])}, {v(vt[1])}, {s(srdX,4)}, {s(sT[0])} offen offset:{4*k}")
    A("s_endpgm")
    return V.hi, S.hi


def _store_temps(cfg):
    Xf, Wf = cfg.vregs["Xf"], cfg.vregs["Wf"]
    t = [Xf[0][0], Xf[1][0], Wf[0][0], Wf[1][0]]
    return t


def epi_qk(A, cfg):
    vr, sr = cfg.vregs, cfg.sregs
    acc, v_lane, vt = vr["acc"], vr["v_lane"], vr["vt"]
    sT, srdD = sr["sT"], sr["srdD"]
    TM, TN = cfg.TM, cfg.TN
    tq = _store_temps(cfg)
    A(f"s_cmp_lt_u32 {s(sr['s_nblk'])}, 4")
    A(f"s_cselect_b32 {s(sT[5])}, 0x{f32bits(QSCALE):08x}, 1.0")
    A(f"s_lshr_b32 {s(sT[0])}, {s(sr['s_nblk'])}, 2")
    A(f"s_lshl_b32 {s(sT[0])}, {s(sT[0])}, 21")
    A(f"s_and_b32 {s(sT[1])}, {s(sr['s_nblk'])}, 3")
    A(f"s_lshl_b32 {s(sT[1])}, {s(sT[1])}, 3")
    A(f"s_mul_i32 {s(sT[2])}, {s(sr['s_wn'])}, {TN*2}")
    A(f"s_add_u32 {s(sT[1])}, {s(sT[1])}, {s(sT[2])}")
    A(f"s_lshl_b32 {s(sT[1])}, {s(sT[1])}, 16")
    A(f"s_add_u32 {s(sT[0])}, {s(sT[0])}, {s(sT[1])}")
    A(f"s_mul_i32 {s(sT[1])}, {s(sr['s_mblk'])}, {cfg.BM//32}")
    A(f"s_mul_i32 {s(sT[2])}, {s(sr['s_wm'])}, {TM}")
    A(f"s_add_u32 {s(sT[1])}, {s(sT[1])}, {s(sT[2])}")
    A(f"s_lshl_b32 {s(sT[1])}, {s(sT[1])}, 10")
    A(f"s_add_u32 {s(sT[0])}, {s(sT[0])}, {s(sT[1])}")
    A(f"v_lshlrev_b32 {v(vt[0])}, 4, {v(v_lane)}")
    n = 0
    for a_ in range(TN):
        for b in range(TM):
            for hs in range(2):
                base = acc[a_][b] + 8 * hs
                for r in range(8):
                    A(f"v_mul_f32 {v(base+r)}, {s(sT[5])}, {v(base+r)}")
                t = tq[n % 4]
                for p in range(4):
                    A(f"v_cvt_pk_bf16_f32 {v(t+p)}, {v(base+2*p)}, {v(base+2*p+1)}")
                off = ((2 * a_ + hs) * 65536 + b * 1024)
                A(f"s_add_u32 {s(sT[1])}, {s(sT[0])}, {off}")
                A(f"buffer_store_dwordx4 {v(t,4)}, {v(vt[0])}, {s(srdD,4)}, {s(sT[1])} offen")
                n += 1


def epi_v(A, cfg):
    vr, sr = cfg.vregs, cfg.sregs
    acc, v_lane, vt, v_hh = vr["acc"], vr["v_lane"], vr["vt"], vr["v_hh"]
    sT, srdD = sr["sT"], sr["srdD"]
    TM, TN = cfg.TM, cfg.TN
    tq = _store_temps(cfg)
    A(f"s_lshl_b32 {s(sT[0])}, {s(sr['s_nblk'])}, 3")
    A(f"s_mul_i32 {s(sT[1])}, {s(sr['s_wn'])}, {TN*2}")
    A(f"s_add_u32 {s(sT[0])}, {s(sT[0])}, {s(sT[1])}")
    A(f"s_lshl_b32 {s(sT[0])}, {s(sT[0])}, 16")
    A(f"s_mul_i32 {s(sT[1])}, {s(sr['s_mblk'])}, {cfg.BM//16}")
    A(f"s_mul_i32 {s(sT[2])}, {s(sr['s_wm'])}, {TM*2}")
    A(f"s_add_u32 {s(sT[1])}, {s(sT[1])}, {s(sT[2])}")
    A(f"s_lshl_b32 {s(sT[1])}, {s(sT[1])}, 9")
    A(f"s_add_u32 {s(sT[0])}, {s(sT[0])}, {s(sT[1])}")
    A(f"v_lshrrev_b32 {v(vt[1])}, 4, {v(v_lane)}")
    A(f"v_and_b32 {v(vt[1])}, 1, {v(vt[1])}")
    A(f"v_lshlrev_b32 {v(vt[1])}, 16, {v(vt[1])}")
    A(f"v_and_b32 {v(vt[2])}, 15, {v(v_lane)}")
    A(f"v_lshlrev_b32 {v(vt[2])}, 4, {v(vt[2])}")
    A(f"v_add_u32 {v(vt[1])}, {v(vt[1])}, {v(vt[2])}")
    A(f"v_lshlrev_b32 {v(vt[2])}, 8, {v(v_hh)}")
    A(f"v_add_u32 {v(vt[0])}, {v(vt[1])}, {v(vt[2])}")
    n = 0
    for a_ in range(TN):
        for b in range(TM):
            for gs in range(2):
                base = acc[a_][b] + 8 * gs
                t = tq[n % 4]
                for p in range(4):
                    A(f"v_cvt_pk_bf16_f32 {v(t+p)}, {v(base+2*p)}, {v(base+2*p+1)}")
                off = (2 * a_) * 65536 + (2 * b + gs) * 512
                A(f"s_add_u32 {s(sT[1])}, {s(sT[0])}, {off}")
                A(f"buffer_store_dwordx4 {v(t,4)}, {v(vt[0])}, {s(srdD,4)}, {s(sT[1])} offen")
                n += 1


def epi_h(A, cfg):
    vr, sr = cfg.vregs, cfg.sregs
    acc, v_tl, vt, v_hh = vr["acc"], vr["v_tl"], vr["vt"], vr["v_hh"]
    sT, srdD = sr["sT"], sr["srdD"]
    TM, TN = cfg.TM, cfg.TN
    Xf, Wf = vr["Xf"], vr["Wf"]
    HS = F * 2
    A(f"s_mul_i32 {s(sT[0])}, {s(sr['s_mblk'])}, {cfg.BM}")
    A(f"s_mul_i32 {s(sT[1])}, {s(sr['s_wm'])}, {TM*32}")
    A(f"s_add_u32 {s(sT[0])}, {s(sT[0])}, {s(sT[1])}")
    A(f"s_mul_i32 {s(sT[0])}, {s(sT[0])}, {HS}")
    A(f"s_mul_i32 {s(sT[1])}, {s(sr['s_nblk'])}, {cfg.BN*2}")
    A(f"s_add_u32 {s(sT[0])}, {s(sT[0])}, {s(sT[1])}")
    A(f"s_mul_i32 {s(sT[1])}, {s(sr['s_wn'])}, {TN*64}")
    A(f"s_add_u32 {s(sT[0])}, {s(sT[0])}, {s(sT[1])}")
    A(f"s_mov_b32 {s(sT[2])}, {HS}")
    A(f"v_mul_lo_u32 {v(vt[0])}, {v(v_tl)}, {s(sT[2])}")
    A(f"v_lshlrev_b32 {v(vt[1])}, 5, {v(v_hh)}")
    A(f"v_add_u32 {v(vt[0])}, {v(vt[0])}, {v(vt[1])}")
    packs = [(Xf[0][0], Xf[1][0]), (Wf[0][0], Wf[1][0])]
    n = 0
    for a_ in range(TN):
        for b in range(TM):
            base = acc[a_][b]
            q0, q1 = packs[n % 2]
            for r in range(16):
                A(f"v_max_f32 {v(base+r)}, 0, {v(base+r)}")
                A(f"v_mul_f32 {v(base+r)}, {v(base+r)}, {v(base+r)}")
            for p in range(4):
                A(f"v_cvt_pk_bf16_f32 {v(q0+p)}, {v(base+2*p)}, {v(base+2*p+1)}")
            for p in range(4):
                A(f"v_cvt_pk_bf16_f32 {v(q1+p)}, {v(base+8+2*p)}, {v(base+8+2*p+1)}")
            off = 32 * b * HS + 32 * a_ * 2
            A(f"s_add_u32 {s(sT[1])}, {s(sT[0])}, {off}")
            A(f"buffer_store_dwordx4 {v(q0,4)}, {v(vt[0])}, {s(srdD,4)}, {s(sT[1])} offen")
            A(f"buffer_store_dwordx4 {v(q1,4)}, {v(vt[0])}, {s(srdD,4)}, {s(sT[1])} offen offset:16")
            n += 1


def epi_b(A, cfg):
    vr, sr = cfg.vregs, cfg.sregs
    acc, v_lane, vt = vr["acc"], vr["v_lane"], vr["vt"]
    sT, srdD = sr["sT"], sr["srdD"]
    TM, TN = cfg.TM, cfg.TN
    Xf, Wf = vr["Xf"], vr["Wf"]
    A(f"s_mul_i32 {s(sT[0])}, {s(sr['s_mblk'])}, {cfg.BM//32}")
    A(f"s_mul_i32 {s(sT[1])}, {s(sr['s_wm'])}, {TM}")
    A(f"s_add_u32 {s(sT[0])}, {s(sT[0])}, {s(sT[1])}")
    A(f"s_lshl_b32 {s(sT[0])}, {s(sT[0])}, 4")
    A(f"s_mul_i32 {s(sT[1])}, {s(sr['s_nblk'])}, {cfg.BN//32}")
    A(f"s_add_u32 {s(sT[0])}, {s(sT[0])}, {s(sT[1])}")
    A(f"s_mul_i32 {s(sT[1])}, {s(sr['s_wn'])}, {TN}")
    A(f"s_add_u32 {s(sT[0])}, {s(sT[0])}, {s(sT[1])}")
    A(f"s_lshl_b32 {s(sT[0])}, {s(sT[0])}, 11")
    A(f"v_lshlrev_b32 {v(vt[0])}, 5, {v(v_lane)}")
    packs = [(Xf[0][0], Xf[1][0]), (Wf[0][0], Wf[1][0])]
    n = 0
    for a_ in range(TN):
        for b in range(TM):
            base = acc[a_][b]
            q0, q1 = packs[n % 2]
            for p in range(4):
                A(f"v_cvt_pk_bf16_f32 {v(q0+p)}, {v(base+2*p)}, {v(base+2*p+1)}")
            for p in range(4):
                A(f"v_cvt_pk_bf16_f32 {v(q1+p)}, {v(base+8+2*p)}, {v(base+8+2*p+1)}")
            off = (b * 16 + a_) * 2048
            A(f"s_add_u32 {s(sT[1])}, {s(sT[0])}, {off}")
            A(f"buffer_store_dwordx4 {v(q0,4)}, {v(vt[0])}, {s(srdD,4)}, {s(sT[1])} offen")
            A(f"buffer_store_dwordx4 {v(q1,4)}, {v(vt[0])}, {s(srdD,4)}, {s(sT[1])} offen offset:16")
            n += 1


def epi_out(A, cfg):
    vr, sr = cfg.vregs, cfg.sregs
    acc, v_lane, v_tl, v_hh, vt = vr["acc"], vr["v_lane"], vr["v_tl"], vr["v_hh"], vr["vt"]
    sT, srdD, srdB, sPWS = sr["sT"], sr["srdD"], sr["srdB"], sr["sPWS"]
    TM, TN = cfg.TM, cfg.TN
    Xf, Wf = vr["Xf"], vr["Wf"]
    bq = [Xf[0][0], Xf[1][0]]
    oq = [Wf[0][0], Wf[1][0]]
    A.add64(sT[0], sPWS, WS_B)
    A.srd(srdB, sT[0], WS_G + S_TOK * 4 - WS_B)
    A(f"v_lshlrev_b32 {v(vt[0])}, 5, {v(v_lane)}")
    A(f"v_lshlrev_b32 {v(vt[1])}, 2, {v(v_tl)}")
    A(f"v_lshlrev_b32 {v(vt[2])}, 10, {v(v_tl)}")
    A(f"v_lshlrev_b32 {v(vt[3])}, 3, {v(v_hh)}")
    A(f"v_add_u32 {v(vt[2])}, {v(vt[2])}, {v(vt[3])}")
    A(f"s_mul_i32 {s(sT[0])}, {s(sr['s_mblk'])}, {cfg.BM//32}")
    A(f"s_mul_i32 {s(sT[1])}, {s(sr['s_wm'])}, {TM}")
    A(f"s_add_u32 {s(sT[0])}, {s(sT[0])}, {s(sT[1])}")
    A(f"s_mul_i32 {s(sT[1])}, {s(sr['s_nblk'])}, {cfg.BN//32}")
    A(f"s_mul_i32 {s(sT[2])}, {s(sr['s_wn'])}, {TN}")
    A(f"s_add_u32 {s(sT[1])}, {s(sT[1])}, {s(sT[2])}")
    for a_ in range(TN):
        for b in range(TM):
            base = acc[a_][b]
            A(f"s_add_u32 {s(sT[2])}, {s(sT[0])}, {b}")
            A(f"s_lshl_b32 {s(sT[3])}, {s(sT[2])}, 4")
            A(f"s_add_u32 {s(sT[3])}, {s(sT[3])}, {s(sT[1])}")
            A(f"s_add_u32 {s(sT[3])}, {s(sT[3])}, {a_}")
            A(f"s_lshl_b32 {s(sT[3])}, {s(sT[3])}, 11")
            A(f"buffer_load_dwordx4 {v(bq[0],4)}, {v(vt[0])}, {s(srdB,4)}, {s(sT[3])} offen")
            A(f"buffer_load_dwordx4 {v(bq[1],4)}, {v(vt[0])}, {s(srdB,4)}, {s(sT[3])} offen offset:16")
            A(f"s_lshl_b32 {s(sT[4])}, {s(sT[2])}, 7")
            A(f"s_add_u32 {s(sT[4])}, {s(sT[4])}, {WS_G - WS_B}")
            A(f"buffer_load_dword {v(vt[4])}, {v(vt[1])}, {s(srdB,4)}, {s(sT[4])} offen")
            A(f"s_lshl_b32 {s(sT[4])}, {s(sT[2])}, 15")
            A(f"s_add_u32 {s(sT[5])}, {s(sT[1])}, {a_}")
            A(f"s_lshl_b32 {s(sT[5])}, {s(sT[5])}, 6")
            A(f"s_add_u32 {s(sT[4])}, {s(sT[4])}, {s(sT[5])}")
            A("s_waitcnt vmcnt(0)")
            A(f"v_sub_f32 {v(vt[5])}, 1.0, {v(vt[4])}")
            A(f"v_cvt_pk_bf16_f32 {v(vt[5])}, {v(vt[5])}, {v(vt[5])}")
            A(f"v_lshlrev_b32 {v(vt[5])}, 16, {v(vt[5])}")
            for p in range(8):
                r0, r1 = base + 2 * p, base + 2 * p + 1
                braw = bq[p >> 2] + (p & 3)
                A(f"v_cvt_pk_bf16_f32 {v(vt[3])}, {v(r0)}, {v(r1)}")
                A(f"v_lshlrev_b32 {v(r0)}, 16, {v(vt[3])}")
                A(f"v_and_b32 {v(r1)}, 0xffff0000, {v(vt[3])}")
                A(f"v_mul_f32 {v(r0)}, {v(r0)}, {v(vt[4])}")
                A(f"v_mul_f32 {v(r1)}, {v(r1)}, {v(vt[4])}")
                A(f"v_cvt_pk_bf16_f32 {v(vt[3])}, {v(r0)}, {v(r1)}")
                A(f"v_lshlrev_b32 {v(r0)}, 16, {v(braw)}")
                A(f"v_and_b32 {v(r1)}, 0xffff0000, {v(braw)}")
                A(f"v_mul_f32 {v(r0)}, {v(r0)}, {v(vt[5])}")
                A(f"v_mul_f32 {v(r1)}, {v(r1)}, {v(vt[5])}")
                A(f"v_cvt_pk_bf16_f32 {v(braw)}, {v(r0)}, {v(r1)}")
                A(f"v_lshlrev_b32 {v(r0)}, 16, {v(vt[3])}")
                A(f"v_and_b32 {v(r1)}, 0xffff0000, {v(vt[3])}")
                A(f"v_lshlrev_b32 {v(vt[3])}, 16, {v(braw)}")
                A(f"v_add_f32 {v(r0)}, {v(r0)}, {v(vt[3])}")
                A(f"v_and_b32 {v(vt[3])}, 0xffff0000, {v(braw)}")
                A(f"v_add_f32 {v(r1)}, {v(r1)}, {v(vt[3])}")
                A(f"v_cvt_pk_bf16_f32 {v(oq[p>>2]+(p&3))}, {v(r0)}, {v(r1)}")
            for i in range(4):
                q = oq[i >> 1] + 2 * (i & 1)
                A(f"buffer_store_dwordx2 {v(q,2)}, {v(vt[2])}, {s(srdD,4)}, {s(sT[4])} offen offset:{16*i}")
```

```python
import os
import sys
sys.path.insert(0, os.path.dirname(os.path.abspath(__file__)))
from asmlib import *
from layout import *
import k_gemm
from k_gemm import Cfg, emit_gemm, epi_qk, epi_v, epi_h, epi_b, epi_out
from k_gate import emit_gate
import k_attn
from k_attn import emit_attn
import k_attn2
from k_attn2 import emit_attn2

DIAG = "diag" in sys.argv
NAME = "gated_mix__softmax_full_mha__dense_activation_squared_relu__prompt"
HERE = os.path.dirname(os.path.abspath(__file__))
OUT = os.path.join(HERE, "..", "cdna_kernels", NAME + ("_diag.s" if DIAG else ".s"))

HEADER = """; Kernarg layout for this problem (96 bytes, ptrs only, base s[0:1]):
"""


def cfg_qk():
    return Cfg(name="QK", WM=4, WN=2, WK=1, TM=2, TN=2, K=512, orient="T", wperm="id", max_vgpr=128,
               x_src=("karg", KA_X), x_size=SZ_X, x_stride=1024, x_col0=0,
               w_karg=KA_WQKV, w_size=SZ_WQKV, w_stride=3072, w_col0=0, nmblk=8,
               d_off=WS_QP, d_size=0x400000, bias_karg=None, bias_size=0, epilogue=epi_qk, diag=(0x4100000 if DIAG else None))


def cfg_v():
    return Cfg(name="V", WM=4, WN=2, WK=1, TM=2, TN=2, K=512, orient="N", wperm="id", max_vgpr=128,
               x_src=("karg", KA_X), x_size=SZ_X, x_stride=1024, x_col0=0,
               w_karg=KA_WQKV, w_size=SZ_WQKV, w_stride=3072, w_col0=1024, nmblk=8,
               d_off=WS_VP, d_size=0x200000, bias_karg=None, bias_size=0, epilogue=epi_v, diag=(0x4100000 if DIAG else None))


def cfg_f1():
    return Cfg(name="F1", WM=4, WN=2, WK=1, TM=2, TN=2, K=512, orient="T", wperm="id", max_vgpr=128,
               x_src=("karg", KA_X), x_size=SZ_X, x_stride=1024, x_col0=0,
               w_karg=KA_W1, w_size=SZ_W1, w_stride=3584, w_col0=0, nmblk=8,
               d_off=WS_H, d_size=S_TOK * F * 2, bias_karg=KA_B1, bias_size=SZ_B1, epilogue=epi_h, diag=(0x4100000 if DIAG else None))


def build_k1():
    A = Asm()
    name = "k1_proj_kernel"
    roles = [(64, "QK"), (32, "V"), (112, "F1"), (32, "G")]
    total = sum(n for n, _ in roles)
    A(f"s_cmp_ge_u32 s2, {total}")
    A("s_cbranch_scc1 k1_exit")
    start = 0
    labs = []
    for n, r in roles:
        lab = f"k1_role_{r}"
        labs.append((start, n, r, lab))
        start += n
    for start, n, r, lab in labs[:-1]:
        A(f"s_cmp_lt_u32 s2, {start+n}")
        A(f"s_cbranch_scc1 {lab}")
    A(f"s_branch {labs[-1][3]}")
    A.label("k1_exit")
    A("s_endpgm")
    vmax, smax = 8, 8
    for start, n, r, lab in labs:
        A.label(lab)
        A(f"s_sub_u32 s3, s2, {start}")
        if r == "QK":
            vh, sh = emit_gemm(A, cfg_qk(), 3)
        elif r == "V":
            vh, sh = emit_gemm(A, cfg_v(), 3)
        elif r == "F1":
            vh, sh = emit_gemm(A, cfg_f1(), 3)
        else:
            vh, sh = emit_gate(A, 3)
        vmax, smax = max(vmax, vh), max(smax, sh)
    lds = 3 * (256 * 128 + 64 * 256)
    launch = f"; @launch kernel={name} grid=({total},1,1) block=(512,1,1) lds={lds}"
    text = kernel_header(name) + A.text() + kernel_descriptor(name, vmax, smax + 6)
    return launch, text


NWATT = int(os.environ.get("NWATT", "16"))


def build_k2(NW=NWATT):
    A = Asm()
    name = "k2_attn_kernel"
    A("s_cmp_ge_u32 s2, 256")
    A("s_cbranch_scc1 k2_exit")
    A("s_branch k2_role_A")
    A.label("k2_exit")
    A("s_endpgm")
    A.label("k2_role_A")
    A("s_mov_b32 s3, s2")
    vh, sh = emit_attn(A, 3, NW=NW, diag=DIAG)
    launch = f"; @launch kernel={name} grid=(256,1,1) block=({NW*64},1,1) lds={k_attn.LDS_TOTAL}"
    text = kernel_header(name) + A.text() + kernel_descriptor(name, vh, sh + 6)
    return launch, text


def build_k2m():
    A = Asm()
    name = "k2_mix_kernel"
    A("s_cmp_ge_u32 s2, 512")
    A("s_cbranch_scc1 k2_exit")
    A("s_cmp_ge_u32 s2, 256")
    A("s_cbranch_scc1 k2_role_F2")
    A("s_branch k2_role_A")
    A.label("k2_exit")
    A("s_endpgm")
    A.label("k2_role_A")
    A("s_mov_b32 s3, s2")
    vh, sh = emit_attn2(A, 3, diag=DIAG)
    A.label("k2_role_F2")
    A("s_sub_u32 s3, s2, 256")
    cfg = cfg_f2()
    vh2, sh2 = emit_gemm(A, cfg, 3)
    vh, sh = max(vh, vh2), max(sh, sh2)
    lds = max(k_attn2.LDS_TOTAL, cfg.lds_bytes)
    assert lds <= 81920
    lds = 81920
    launch = f"; @launch kernel={name} grid=(512,1,1) block=(512,1,1) lds={lds}"
    text = kernel_header(name) + A.text() + kernel_descriptor(name, vh, sh + 6)
    return launch, text


def cfg_f2():
    return Cfg(name="F2", WM=2, WN=2, WK=2, TM=1, TN=1, K=1792, orient="T", wperm="hperm", max_vgpr=128,
               x_src=("ws", WS_H), x_size=S_TOK * F * 2, x_stride=3584, x_col0=0,
               w_karg=KA_W2, w_size=SZ_W2, w_stride=1024, w_col0=0, nmblk=32,
               d_off=WS_B, d_size=0x200000, bias_karg=KA_B2, bias_size=SZ_B2, epilogue=epi_b, NST=5, diag=(0x4200000 if DIAG else None))


def cfg_out():
    return Cfg(name="OUT", WM=2, WN=2, WK=2, TM=1, TN=1, K=512, orient="T", wperm="operm", max_vgpr=128,
               x_src=("ws", WS_O), x_size=0x200000, x_stride=1024, x_col0=0,
               w_karg=KA_WO, w_size=SZ_WO, w_stride=1024, w_col0=0, nmblk=32,
               d_off=None, d_size=SZ_OUT, bias_karg=None, bias_size=0, epilogue=epi_out, NST=5, diag=(0x4300000 if DIAG else None))


def build_simple_gemm(name, cfg, nwg):
    A = Asm()
    A(f"s_cmp_ge_u32 s2, {nwg}")
    A(f"s_cbranch_scc1 {name}_exit")
    A(f"s_branch {name}_role")
    A.label(f"{name}_exit")
    A("s_endpgm")
    A.label(f"{name}_role")
    A("s_mov_b32 s3, s2")
    vh, sh = emit_gemm(A, cfg, 3)
    lds = cfg.lds_bytes
    launch = f"; @launch kernel={name} grid=({nwg},1,1) block=(512,1,1) lds={lds}"
    text = kernel_header(name) + A.text() + kernel_descriptor(name, vh, sh + 6)
    return launch, text


def build_k3():
    return build_simple_gemm("k3_ffn2_kernel", cfg_f2(), 256)


def build_k4():
    return build_simple_gemm("k4_out_kernel", cfg_out(), 256)


def main():
    launches, texts = [], []
    for b in (build_k1, build_k2m, build_k4):
        l, t = b()
        launches.append(l)
        texts.append(t)
    out = HEADER + "\n".join(launches) + "\n" + '.amdgcn_target "amdgcn-amd-amdhsa--gfx950"\n' + "\n".join(texts)
    with open(OUT, "w") as f:
        f.write(out)
    print("wrote", OUT, len(out), "bytes")


if __name__ == "__main__":
    main()
```

```python
class Regs:
    def __init__(self, prefix, start, limit):
        self.prefix = prefix
        self.next = start
        self.limit = limit
        self.names = {}
        self.hi = start

    def alloc(self, n=1, align=1, name=None):
        s = (self.next + align - 1) // align * align
        if s + n > self.limit:
            raise RuntimeError(f"out of {self.prefix} registers: need {s+n} > {self.limit} ({name})")
        self.next = s + n
        self.hi = max(self.hi, self.next)
        if name:
            self.names[name] = (s, n)
        return s

    def mark(self):
        return self.next

    def release(self, mark):
        self.next = mark


def v(i, n=1):
    return f"v{i}" if n == 1 else f"v[{i}:{i+n-1}]"


def s(i, n=1):
    return f"s{i}" if n == 1 else f"s[{i}:{i+n-1}]"


def a(i, n=1):
    return f"a{i}" if n == 1 else f"a[{i}:{i+n-1}]"


class Asm:
    def __init__(self):
        self.lines = []
        self._lab = 0

    def __call__(self, text):
        for ln in text.split("\n"):
            ln = ln.strip()
            if ln:
                self.lines.append("    " + ln)

    def c(self, text):
        self.lines.append("    ; " + text)

    def label(self, name):
        self.lines.append(name + ":")

    def newlabel(self, base="L"):
        self._lab += 1
        return f"{base}_{self._lab}"

    def raw(self, text):
        self.lines.append(text)

    def text(self):
        return "\n".join(self.lines) + "\n"

    def srd(self, sd, sbase, size, off_lo=None):
        self(f"s_mov_b32 {s(sd)}, {s(sbase)}")
        self(f"s_mov_b32 {s(sd+1)}, {s(sbase+1)}")
        if isinstance(size, int):
            self(f"s_mov_b32 {s(sd+2)}, {size}")
        else:
            self(f"s_mov_b32 {s(sd+2)}, {size}")
        self(f"s_mov_b32 {s(sd+3)}, 0x00020000")

    def add64(self, sdst, ssrc, imm):
        self(f"s_add_u32 {s(sdst)}, {s(ssrc)}, {imm}")
        self(f"s_addc_u32 {s(sdst+1)}, {s(ssrc+1)}, 0")

    def xswz(self, r, BK):
        if BK == 64:
            self(f"v_lshrrev_b32 {v(r)}, 1, {v(r)}")
            self(f"v_and_b32 {v(r)}, 7, {v(r)}")
        else:
            self(f"v_lshrrev_b32 {v(r)}, 2, {v(r)}")
            self(f"v_and_b32 {v(r)}, 3, {v(r)}")

    def nop(self, n):
        while n > 0:
            k = min(n, 16)
            self(f"s_nop {k-1}")
            n -= k


def kernel_descriptor(name, vgprs, sgprs, accum_offset=None, extra=""):
    if accum_offset is None:
        accum_offset = (vgprs + 3) // 4 * 4
    return f""".section .rodata,"a"
.p2align 6
.amdhsa_kernel {name}
  .amdhsa_next_free_vgpr {vgprs}
  .amdhsa_next_free_sgpr {sgprs}
  .amdhsa_accum_offset {accum_offset}
  .amdhsa_group_segment_fixed_size 0
  .amdhsa_kernarg_size 96
  .amdhsa_user_sgpr_count 2
  .amdhsa_user_sgpr_kernarg_segment_ptr 1
  .amdhsa_system_sgpr_workgroup_id_x 1
{extra}.end_amdhsa_kernel
.text
"""


def kernel_header(name):
    return f""".text
.globl {name}
.p2align 8
.type {name},@function
{name}:
"""
```

```python
from asmlib import *
from layout import *
import os
STF = os.environ.get('STF', '')

RING = 4
SLOT = 16384
LDS_SCR = RING * SLOT
LDS_TOTAL = LDS_SCR + 64
WS_DIAG = 0x4000000


def emit_attn2(A, s_idx, max_vgpr=128, diag=False, signal=False):
    NW = 8
    NI = 64
    CPI = 8
    NCH = 8
    NTW = 8

    V = Regs("v", 1, max_vgpr)
    S = Regs("s", 4, 96)
    sPWS = S.alloc(2, 2)
    sPB = S.alloc(2, 2)
    srdQ = S.alloc(4, 4)
    srdK = S.alloc(4, 4)
    srdV = S.alloc(4, 4)
    srdO = S.alloc(4, 4)
    s_wave = S.alloc()
    s_head = S.alloc()
    s_qblk = S.alloc()
    s_hoff = S.alloc()
    s_dsrc = S.alloc()
    s_dlds = S.alloc()
    sMaskV = S.alloc(2, 2)
    sT = [S.alloc() for _ in range(8)]
    sCnt = S.alloc()
    sStamp = [S.alloc(2, 2) for _ in range(7)] if diag else None

    def stamp(k):
        if diag:
            A(f"s_memtime {s(sStamp[k],2)}" if k < 5 else f"s_memrealtime {s(sStamp[k],2)}")
            A("s_waitcnt lgkmcnt(0)")

    Sb = [V.alloc(16, 4), V.alloc(16, 4)]
    Cb = V.alloc(16, 4)
    Ob = V.alloc(16, 4)
    Pb = V.alloc(8, 4)
    Qf = V.alloc(4, 4)
    Kf = [V.alloc(4, 4), V.alloc(4, 4)]
    Vf = [[V.alloc(4, 4), V.alloc(4, 4)], [V.alloc(4, 4), V.alloc(4, 4)]]
    vKa = V.alloc()
    vVa = V.alloc()
    v_lane = V.alloc()
    v_hh = V.alloc()
    vt = [V.alloc() for _ in range(8)]
    v_l16 = vKa

    A.c("==== attention role (ring staged, 8 waves)")
    if os.environ.get("APRIO"):
        A(f"s_setprio {os.environ.get('APRIO')}")
    stamp(0)
    stamp(5)
    A(f"s_load_dwordx2 {s(sPWS,2)}, s[0:1], {KA_WS}")
    A(f"v_lshrrev_b32 {v(vt[0])}, 6, v0")
    A(f"v_and_b32 {v(v_lane)}, 63, v0")
    A("s_nop 0")
    A(f"v_readfirstlane_b32 {s(s_wave)}, {v(vt[0])}")
    A(f"v_lshrrev_b32 {v(v_hh)}, 5, {v(v_lane)}")
    A(f"v_lshlrev_b32 {v(v_l16)}, 4, {v(v_lane)}")
    A(f"s_and_b32 {s(s_head)}, {s(s_idx)}, 31")
    A(f"s_lshr_b32 {s(s_qblk)}, {s(s_idx)}, 5")
    A(f"s_mov_b32 {s(sMaskV)}, 0x0000ffff")
    A(f"s_mov_b32 {s(sMaskV+1)}, 0x0000ffff")
    A("s_waitcnt lgkmcnt(0)")
    for srd, off in ((srdQ, WS_QP), (srdK, WS_KP), (srdV, WS_VP), (srdO, WS_O)):
        A.add64(sPB, sPWS, off)
        A.srd(srd, sPB, 0x200000)
    A(f"s_lshl_b32 {s(s_hoff)}, {s(s_head)}, 16")
    A(f"s_lshl_b32 {s(s_dlds)}, {s(s_wave)}, 10")
    A(f"s_add_u32 {s(s_dsrc)}, {s(s_dlds)}, {s(s_hoff)}")

    def dma_chunk(c):
        slot = (c % RING) * SLOT
        A(f"s_add_u32 m0, {s(s_dlds)}, {slot}")
        A(f"s_add_u32 {s(sT[4])}, {s(s_dsrc)}, {c*8192}")
        A(f"buffer_load_dwordx4 {v(v_l16)}, {s(srdK,4)}, {s(sT[4])} offen lds")
        A(f"s_add_u32 m0, {s(s_dlds)}, {slot + 8192}")
        A("s_nop 0")
        A(f"buffer_load_dwordx4 {v(v_l16)}, {s(srdV,4)}, {s(sT[4])} offen lds")

    Kn = [Sb[0] + 4 * j for j in range(4)] + [Sb[1] + 4 * j for j in range(4)]
    A(f"s_lshl_b32 {s(sT[0])}, {s(s_qblk)}, 3")
    A(f"s_add_u32 {s(sT[0])}, {s(sT[0])}, {s(s_wave)}")
    A(f"s_lshl_b32 {s(sT[0])}, {s(sT[0])}, 10")
    A(f"s_add_u32 {s(sT[0])}, {s(sT[0])}, {s(s_hoff)}")
    A(f"buffer_load_dwordx4 {v(Qf,4)}, {v(v_l16)}, {s(srdQ,4)}, {s(sT[0])} offen")
    A(f"s_lshl_b32 {s(sT[0])}, {s(s_wave)}, 13")
    A(f"s_add_u32 {s(sT[0])}, {s(sT[0])}, {s(s_hoff)}")
    for j in range(NTW):
        A(f"s_add_u32 {s(sT[1])}, {s(sT[0])}, {j*1024}")
        A(f"buffer_load_dwordx4 {v(Kn[j],4)}, {v(v_l16)}, {s(srdK,4)}, {s(sT[1])} offen")
    for c in range(RING - 1):
        dma_chunk(c)
    A(f"v_and_b32 {v(vt[0])}, 15, {v(v_lane)}")
    A(f"v_lshlrev_b32 {v(vt[1])}, 4, {v(v_hh)}")
    A(f"v_add_u32 {v(vt[0])}, {v(vt[0])}, {v(vt[1])}")
    A(f"v_lshlrev_b32 {v(vt[0])}, 4, {v(vt[0])}")
    A(f"v_add_u32 {v(vVa)}, 8192, {v(vt[0])}")
    A(f"v_and_b32 {v(vt[0])}, 31, {v(v_lane)}")
    A(f"v_cmp_eq_u32 vcc, 16, {v(vt[0])}")
    A(f"v_mov_b32 {v(vt[1])}, 0x3f803f80")
    A("s_nop 1")
    A(f"v_cndmask_b32 {v(vt[2])}, 0, {v(vt[1])}, vcc")
    for bsel in range(2):
        for m in range(2):
            for r in range(4):
                A(f"v_mov_b32 {v(Vf[bsel][m]+r)}, {v(vt[2])}")
    for r in range(16):
        A(f"v_mov_b32 {v(Ob+r)}, 0")

    def sq_sum(dst, src4):
        A(f"v_mov_b32 {v(dst)}, 0")
        for p in range(4):
            A(f"v_lshlrev_b32 {v(vt[6])}, 16, {v(src4+p)}")
            A(f"v_and_b32 {v(vt[7])}, 0xffff0000, {v(src4+p)}")
            A(f"v_fma_f32 {v(dst)}, {v(vt[6])}, {v(vt[6])}, {v(dst)}")
            A(f"v_fma_f32 {v(dst)}, {v(vt[7])}, {v(vt[7])}, {v(dst)}")

    def half_sum(x, t):
        A(f"v_mov_b32 {v(t)}, {v(x)}")
        A("s_nop 1")
        A(f"v_permlane32_swap_b32 {v(t)}, {v(x)}")
        A("s_nop 1")
        A(f"v_add_f32 {v(x)}, {v(x)}, {v(t)}")

    ndma0 = 2 * (RING - 1)
    A(f"s_waitcnt vmcnt({ndma0})")
    for j in range(NTW):
        sq_sum(vt[0], Kn[j])
        half_sum(vt[0], vt[1])
        if j == 0:
            A(f"v_mov_b32 {v(vt[2])}, {v(vt[0])}")
        else:
            A(f"v_max_f32 {v(vt[2])}, {v(vt[2])}, {v(vt[0])}")
    sq_sum(vt[3], Qf)
    half_sum(vt[3], vt[1])
    A("s_nop 1")
    A(f"v_max_f32_dpp {v(vt[0])}, {v(vt[2])}, {v(vt[2])} quad_perm:[1,0,3,2] row_mask:0xf bank_mask:0xf")
    A("s_nop 1")
    A(f"v_max_f32_dpp {v(vt[1])}, {v(vt[0])}, {v(vt[0])} quad_perm:[2,3,0,1] row_mask:0xf bank_mask:0xf")
    A("s_nop 1")
    A(f"v_max_f32_dpp {v(vt[0])}, {v(vt[1])}, {v(vt[1])} row_half_mirror row_mask:0xf bank_mask:0xf")
    A("s_nop 1")
    A(f"v_max_f32_dpp {v(vt[1])}, {v(vt[0])}, {v(vt[0])} row_mirror row_mask:0xf bank_mask:0xf")
    A("s_nop 1")
    A(f"v_readlane_b32 {s(sT[0])}, {v(vt[1])}, 0")
    A(f"v_readlane_b32 {s(sT[1])}, {v(vt[1])}, 16")
    A(f"v_readlane_b32 {s(sT[2])}, {v(vt[1])}, 32")
    A(f"v_readlane_b32 {s(sT[3])}, {v(vt[1])}, 48")
    A("s_nop 3")
    A(f"s_max_u32 {s(sT[0])}, {s(sT[0])}, {s(sT[1])}")
    A(f"s_max_u32 {s(sT[2])}, {s(sT[2])}, {s(sT[3])}")
    A(f"s_max_u32 {s(sT[0])}, {s(sT[0])}, {s(sT[2])}")
    A(f"v_mov_b32 {v(vt[0])}, {s(sT[0])}")
    A(f"s_lshl_b32 {s(sT[1])}, {s(s_wave)}, 2")
    A(f"s_add_u32 {s(sT[1])}, {s(sT[1])}, {LDS_SCR}")
    A(f"v_mov_b32 {v(vt[1])}, {s(sT[1])}")
    A(f"ds_write_b32 {v(vt[1])}, {v(vt[0])}")
    A(f"s_waitcnt vmcnt({ndma0 - 2}) lgkmcnt(0)")
    A("s_barrier")
    stamp(1)
    A(f"v_mov_b32 {v(vt[1])}, {LDS_SCR}")
    A(f"ds_read_b128 {v(Sb[0],4)}, {v(vt[1])}")
    A(f"ds_read_b128 {v(Sb[0]+4,4)}, {v(vt[1])} offset:16")
    A(f"ds_read_b128 {v(Kf[0],4)}, {v(vKa)}")
    A(f"ds_read_b128 {v(Kf[1],4)}, {v(vKa)} offset:1024")
    A(f"s_mov_b64 exec, {s(sMaskV,2)}")
    A(f"ds_read_b128 {v(Vf[0][0],4)}, {v(vVa)}")
    A(f"ds_read_b128 {v(Vf[0][1],4)}, {v(vVa)} offset:512")
    A("s_mov_b64 exec, -1")
    A("s_waitcnt lgkmcnt(4)")
    A(f"v_max_f32 {v(vt[2])}, {v(Sb[0])}, {v(Sb[0]+1)}")
    for q in range(2, NW):
        A(f"v_max_f32 {v(vt[2])}, {v(vt[2])}, {v(Sb[0]+q)}")
    A(f"v_mul_f32 {v(vt[2])}, {v(vt[2])}, {v(vt[3])}")
    A(f"v_sqrt_f32 {v(vt[2])}, {v(vt[2])}")
    A("s_nop 0")
    A(f"v_mul_f32 {v(vt[2])}, 0x3f808000, {v(vt[2])}")
    A(f"v_add_f32 {v(vt[2])}, 0x35800000, {v(vt[2])}")
    for r in range(16):
        A(f"v_sub_f32 {v(Cb+r)}, 0, {v(vt[2])}")
    A("s_waitcnt lgkmcnt(2)")
    A("s_nop 1")
    A(f"v_mfma_f32_32x32x16_bf16 {v(Sb[0],16)}, {v(Kf[0],4)}, {v(Qf,4)}, {v(Cb,16)}")
    stamp(2)

    def koff(t):
        return ((t // CPI) % RING) * SLOT + (t % CPI) * 1024

    for i in range(NI):
        A.c(f"-- tile {i}")
        cur, nxt = i & 1, (i + 1) & 1
        if (i + 2) % CPI == 0 and (i + 2) // CPI < NCH:
            c = (i + 2) // CPI
            A(f"s_waitcnt vmcnt({2 if c + 1 < NCH else 0})")
            A("s_barrier")
            if c + 2 < NCH:
                dma_chunk(c + 2)
        A("s_waitcnt lgkmcnt(0)")
        if i + 1 < NI:
            A(f"v_mfma_f32_32x32x16_bf16 {v(Sb[nxt],16)}, {v(Kf[nxt],4)}, {v(Qf,4)}, {v(Cb,16)}")
        if i + 2 < NI:
            A(f"ds_read_b128 {v(Kf[cur],4)}, {v(vKa)} offset:{koff(i+2)}")
        if i + 1 < NI:
            A(f"s_mov_b64 exec, {s(sMaskV,2)}")
            A(f"ds_read_b128 {v(Vf[nxt][0],4)}, {v(vVa)} offset:{koff(i+1)}")
            A(f"ds_read_b128 {v(Vf[nxt][1],4)}, {v(vVa)} offset:{koff(i+1)+512}")
            A("s_mov_b64 exec, -1")
        for r in range(16):
            A(f"v_exp_f32 {v(Sb[cur]+r)}, {v(Sb[cur]+r)}")
        for p in range(8):
            A(f"v_cvt_pk_bf16_f32 {v(Pb+p)}, {v(Sb[cur]+2*p)}, {v(Sb[cur]+2*p+1)}")
        A(f"v_mfma_f32_32x32x16_bf16 {v(Ob,16)}, {v(Vf[cur][0],4)}, {v(Pb,4)}, {v(Ob,16)}")
        A("s_nop 0")
        A(f"v_mfma_f32_32x32x16_bf16 {v(Ob,16)}, {v(Vf[cur][1],4)}, {v(Pb+4,4)}, {v(Ob,16)}")
    A.nop(16)
    stamp(3)
    lab_norm = A.newlabel("Lnorm")
    A(f"v_mov_b32 {v(vt[1])}, {v(Ob+8)}")
    A("s_nop 1")
    A(f"v_permlane32_swap_b32 {v(vt[1])}, {v(Ob+8)}")
    A("s_nop 1")
    A(f"v_cmp_nle_f32 vcc, 0x12800000, {v(vt[1])}")
    A(f"s_cbranch_vccz {lab_norm}")
    A.c("---- fallback: running-max online softmax")
    vM = vt[2]
    A(f"v_mov_b32 {v(vM)}, 0xff7fffff")
    for r in range(16):
        A(f"v_mov_b32 {v(Ob+r)}, 0")
    A(f"v_subrev_u32 {v(vt[4])}, 8192, {v(vVa)}")
    A(f"s_mov_b32 {s(sCnt)}, 0")
    A(f"s_mov_b32 {s(sT[5])}, {s(s_hoff)}")
    lab_fb = A.newlabel("Lfb")
    A.label(lab_fb)
    A(f"buffer_load_dwordx4 {v(Kf[0],4)}, {v(v_l16)}, {s(srdK,4)}, {s(sT[5])} offen")
    A(f"s_mov_b64 exec, {s(sMaskV,2)}")
    A(f"buffer_load_dwordx4 {v(Vf[0][0],4)}, {v(vt[4])}, {s(srdV,4)}, {s(sT[5])} offen")
    A(f"buffer_load_dwordx4 {v(Vf[0][1],4)}, {v(vt[4])}, {s(srdV,4)}, {s(sT[5])} offen offset:512")
    A("s_mov_b64 exec, -1")
    A("s_waitcnt vmcnt(0)")
    A("s_nop 1")
    A(f"v_mfma_f32_32x32x16_bf16 {v(Sb[0],16)}, {v(Kf[0],4)}, {v(Qf,4)}, 0")
    A.nop(16)
    A(f"v_max3_f32 {v(vt[0])}, {v(Sb[0])}, {v(Sb[0]+1)}, {v(Sb[0]+2)}")
    for r in range(3, 15, 2):
        A(f"v_max3_f32 {v(vt[0])}, {v(vt[0])}, {v(Sb[0]+r)}, {v(Sb[0]+r+1)}")
    A(f"v_max_f32 {v(vt[0])}, {v(vt[0])}, {v(Sb[0]+15)}")
    A(f"v_mov_b32 {v(vt[1])}, {v(vt[0])}")
    A("s_nop 1")
    A(f"v_permlane32_swap_b32 {v(vt[1])}, {v(vt[0])}")
    A("s_nop 1")
    A(f"v_max3_f32 {v(vt[0])}, {v(vt[0])}, {v(vt[1])}, {v(vM)}")
    A(f"v_sub_f32 {v(vt[1])}, {v(vM)}, {v(vt[0])}")
    A(f"v_exp_f32 {v(vt[1])}, {v(vt[1])}")
    A(f"v_mov_b32 {v(vM)}, {v(vt[0])}")
    for r in range(9):
        A(f"v_mul_f32 {v(Ob+r)}, {v(Ob+r)}, {v(vt[1])}")
    for r in range(16):
        A(f"v_sub_f32 {v(Sb[0]+r)}, {v(Sb[0]+r)}, {v(vM)}")
        A(f"v_exp_f32 {v(Sb[0]+r)}, {v(Sb[0]+r)}")
    A("s_nop 0")
    for p in range(8):
        A(f"v_cvt_pk_bf16_f32 {v(Pb+p)}, {v(Sb[0]+2*p)}, {v(Sb[0]+2*p+1)}")
    A("s_nop 1")
    A(f"v_mfma_f32_32x32x16_bf16 {v(Ob,16)}, {v(Vf[0][0],4)}, {v(Pb,4)}, {v(Ob,16)}")
    A(f"v_mfma_f32_32x32x16_bf16 {v(Ob,16)}, {v(Vf[0][1],4)}, {v(Pb+4,4)}, {v(Ob,16)}")
    A.nop(16)
    A(f"s_add_u32 {s(sT[5])}, {s(sT[5])}, 1024")
    A(f"s_add_u32 {s(sCnt)}, {s(sCnt)}, 1")
    A(f"s_cmp_lt_u32 {s(sCnt)}, 64")
    A(f"s_cbranch_scc1 {lab_fb}")
    A(f"v_mov_b32 {v(vt[1])}, {v(Ob+8)}")
    A("s_nop 1")
    A(f"v_permlane32_swap_b32 {v(vt[1])}, {v(Ob+8)}")
    A("s_nop 1")
    A.label(lab_norm)
    A(f"v_rcp_f32 {v(vt[2])}, {v(vt[1])}")
    A("s_nop 0")
    for r in range(8):
        A(f"v_mul_f32 {v(Ob+r)}, {v(Ob+r)}, {v(vt[2])}")
    for p in range(4):
        A(f"v_cvt_pk_bf16_f32 {v(Pb+p)}, {v(Ob+2*p)}, {v(Ob+2*p+1)}")
    A(f"v_lshlrev_b32 {v(vt[0])}, 4, {v(v_lane)}")
    A(f"s_lshl_b32 {s(sT[0])}, {s(s_qblk)}, 3")
    A(f"s_add_u32 {s(sT[0])}, {s(sT[0])}, {s(s_wave)}")
    A(f"s_lshl_b32 {s(sT[0])}, {s(sT[0])}, 5")
    A(f"s_add_u32 {s(sT[0])}, {s(sT[0])}, {s(s_head)}")
    A(f"s_lshl_b32 {s(sT[0])}, {s(sT[0])}, 10")
    if signal:
        A(f"buffer_store_dwordx4 {v(Pb,4)}, {v(vt[0])}, {s(srdO,4)}, {s(sT[0])} offen")
        A(f"s_load_dwordx2 {s(sPB,2)}, s[0:1], {KA_DBG}")
        A("s_waitcnt vmcnt(0) lgkmcnt(0)")
        A("s_barrier")
        lab_sig = A.newlabel("Lsig")
        A(f"s_cmp_lg_u32 {s(s_wave)}, 0")
        A(f"s_cbranch_scc1 {lab_sig}")
        A("buffer_wbl2 sc1")
        A("s_waitcnt vmcnt(0)")
        if diag and os.environ.get("FINE2"):
            stamp(1)
        A.srd(srdQ, sPB, 256)
        A(f"s_lshl_b32 {s(sT[2])}, {s(s_qblk)}, 2")
        A(f"v_mov_b32 {v(vt[1])}, 0")
        A(f"v_mov_b32 {v(vt[2])}, 1")
        A("s_mov_b64 exec, 1")
        A(f"buffer_atomic_add {v(vt[2])}, {v(vt[1])}, {s(srdQ,4)}, {s(sT[2])} offen sc1")
        A("s_mov_b64 exec, -1")
        A.label(lab_sig)
    else:
        A(f"buffer_store_dwordx4 {v(Pb,4)}, {v(vt[0])}, {s(srdO,4)}, {s(sT[0])} offen{STF}")
    if diag:
        stamp(4)
        stamp(6)
        A.add64(sPB, sPWS, WS_DIAG)
        A.srd(srdQ, sPB, 0x100000)
        A(f"s_lshl_b32 {s(sT[0])}, {s(s_idx)}, 4")
        A(f"s_add_u32 {s(sT[0])}, {s(sT[0])}, {s(s_wave)}")
        A(f"s_lshl_b32 {s(sT[0])}, {s(sT[0])}, 6")
        A(f"v_mov_b32 {v(vt[1])}, 0")
        A("s_mov_b64 exec, 1")
        for k in range(7):
            A(f"v_mov_b32 {v(vt[0])}, {s(sStamp[k])}")
            A(f"buffer_store_dword {v(vt[0])}, {v(vt[1])}, {s(srdQ,4)}, {s(sT[0])} offen offset:{4*k}")
    A("s_endpgm")
    return V.hi, S.hi
```

```python
import struct
from asmlib import *
from layout import *

NST_DEFAULT = 3
import os
STF = os.environ.get('STF', '')


def f32bits(x):
    return struct.unpack("<I", struct.pack("<f", x))[0]


class Cfg:
    def __init__(self, **kw):
        self.__dict__.update(kw)


def w_const(mode, t, a2):
    if mode == "id":
        return 16 * t + 4 * a2
    if mode == "operm":
        return 16 * t + 8 * a2
    if mode == "hperm":
        return 32 * (t >> 1) + 4 * (t & 1) + 8 * a2
    raise ValueError(mode)


def w_hhcoef(mode):
    return {"id": 8, "operm": 4, "hperm": 16}[mode]


def emit_gemm(A, cfg, s_idx):
    WM, WN, WK, TM, TN = cfg.WM, cfg.WN, cfg.WK, cfg.TM, cfg.TN
    BM, BN = WM * TM * 32, WN * TN * 32
    BK = getattr(cfg, "BK", 64)
    XR = BK * 2
    RSW = BN * 2
    XB = BM * XR
    WB = BK * RSW
    SST = XB + WB
    nX, nW = XB // 8192, WB // 8192
    assert nX >= 1 and nW >= 1 and XB % 8192 == 0 and WB % 8192 == 0 and RSW in (128, 256) and BK in (32, 64)
    assert WM * WN * WK == 8
    KS = cfg.K // BK
    KSUB = BK // 16
    NST = getattr(cfg, 'NST', NST_DEFAULT)
    NT = KSUB // WK
    assert NT >= 1
    mode = cfg.wperm
    nlds = TM + 2 * TN
    ndma = nX + nW

    V = Regs("v", getattr(cfg, "vstart", 1), cfg.max_vgpr)
    S = Regs("s", 4, 96)

    sPX = S.alloc(2, 2)
    sPW = S.alloc(2, 2)
    sPWS = S.alloc(2, 2)
    sPB = S.alloc(2, 2)
    srdX = S.alloc(4, 4)
    srdW = S.alloc(4, 4)
    srdD = S.alloc(4, 4)
    srdB = S.alloc(4, 4)
    s_wave = S.alloc()
    s_wm = S.alloc()
    s_wn = S.alloc()
    s_wk = S.alloc()
    s_mblk = S.alloc()
    s_nblk = S.alloc()
    sXo = [S.alloc() for _ in range(nX)]
    sWo = [S.alloc() for _ in range(nW)]
    sXl = S.alloc()
    sWl = S.alloc()
    s_kpos = S.alloc()
    s_kposW = S.alloc()
    sWrapX = S.alloc()
    sWrapW = S.alloc()
    sCK = [S.alloc() for _ in range(4)]
    _t0 = S.alloc(6, 2)
    sT = [_t0 + i for i in range(6)]
    diag = getattr(cfg, "diag", None)
    sStamp = [S.alloc(2, 2) for _ in range(7)] if diag is not None else None

    def stamp(k):
        if diag is not None:
            A(f"s_memtime {s(sStamp[k],2)}" if k < 5 else f"s_memrealtime {s(sStamp[k],2)}")
            A("s_waitcnt lgkmcnt(0)")
    cfg.sregs = dict(sPWS=sPWS, srdD=srdD, srdB=srdB, s_wave=s_wave, s_wm=s_wm, s_wn=s_wn, s_wk=s_wk,
                     s_mblk=s_mblk, s_nblk=s_nblk, sT=sT, sPB=sPB)

    acc = [[V.alloc(16, 4) for b in range(TM)] for a_ in range(TN)]
    Xf = [[V.alloc(4, 4) for b in range(TM)] for p in range(2)]
    Wf = [[V.alloc(4, 4) for a_ in range(TN)] for p in range(2)]
    vXa = [V.alloc() for _ in range(NT)]
    vWa = [V.alloc() for _ in range(TN)]
    vXd = [V.alloc() for _ in range(nX)]
    vWd = V.alloc()
    v_lane = V.alloc()
    v_hh = V.alloc()
    v_tl = V.alloc()
    vt = [V.alloc() for _ in range(6)]
    cfg.vregs = dict(acc=acc, v_lane=v_lane, v_hh=v_hh, v_tl=v_tl, vt=vt, Xf=Xf, Wf=Wf)
    cfg.V, cfg.S = V, S

    A.c(f"==== GEMM role {cfg.name}: BM={BM} BN={BN} WM={WM} WN={WN} WK={WK} K={cfg.K} orient={cfg.orient}")
    stamp(0)
    stamp(5)
    if cfg.x_src[0] == "karg":
        A(f"s_load_dwordx2 {s(sPX,2)}, s[0:1], {cfg.x_src[1]}")
    A(f"s_load_dwordx2 {s(sPW,2)}, s[0:1], {cfg.w_karg}")
    A(f"s_load_dwordx2 {s(sPWS,2)}, s[0:1], {KA_WS}")
    if cfg.bias_karg is not None:
        A(f"s_load_dwordx2 {s(sPB,2)}, s[0:1], {cfg.bias_karg}")
    if cfg.d_off is None:
        A(f"s_load_dwordx2 {s(sPB,2)}, s[0:1], {KA_OUT}")
    A(f"v_lshrrev_b32 {v(vt[0])}, 6, v0")
    A(f"v_and_b32 {v(v_lane)}, 63, v0")
    A("s_nop 0")
    A(f"v_readfirstlane_b32 {s(s_wave)}, {v(vt[0])}")
    A(f"v_lshrrev_b32 {v(v_hh)}, 5, {v(v_lane)}")
    A(f"v_and_b32 {v(v_tl)}, 31, {v(v_lane)}")
    A(f"s_and_b32 {s(s_mblk)}, {s(s_idx)}, {cfg.nmblk-1}")
    A(f"s_lshr_b32 {s(s_nblk)}, {s(s_idx)}, {cfg.nmblk.bit_length()-1}")
    A(f"s_and_b32 {s(s_wk)}, {s(s_wave)}, {WK-1}")
    A(f"s_lshr_b32 {s(sT[0])}, {s(s_wave)}, {WK.bit_length()-1}")
    A(f"s_and_b32 {s(s_wm)}, {s(sT[0])}, {WM-1}")
    A(f"s_lshr_b32 {s(s_wn)}, {s(sT[0])}, {WM.bit_length()-1}")
    A("s_waitcnt lgkmcnt(0)")
    if os.environ.get("FINE"):
        stamp(1)
    if cfg.x_src[0] == "karg":
        A.srd(srdX, sPX, cfg.x_size)
    else:
        A.add64(sPX, sPWS, cfg.x_src[1])
        A.srd(srdX, sPX, cfg.x_size)
    A(f"s_mul_i32 {s(sT[0])}, {s(s_nblk)}, {BN*2}")
    A(f"s_add_u32 {s(sT[0])}, {s(sT[0])}, {cfg.w_col0*2}")
    A(f"s_add_u32 {s(sPW)}, {s(sPW)}, {s(sT[0])}")
    A(f"s_addc_u32 {s(sPW+1)}, {s(sPW+1)}, 0")
    A(f"s_sub_u32 {s(sT[1])}, {cfg.w_size}, {s(sT[0])}")
    A(f"s_mov_b32 {s(srdW)}, {s(sPW)}")
    A(f"s_mov_b32 {s(srdW+1)}, {s(sPW+1)}")
    A(f"s_mov_b32 {s(srdW+2)}, {s(sT[1])}")
    A(f"s_mov_b32 {s(srdW+3)}, 0x00020000")
    A.add64(sT[0], sPWS, cfg.d_off) if cfg.d_off is not None else None
    if cfg.d_off is not None:
        A.srd(srdD, sT[0], cfg.d_size)
    else:
        assert cfg.bias_karg is None
        A.srd(srdD, sPB, cfg.d_size)
    if cfg.bias_karg is not None:
        A.srd(srdB, sPB, cfg.bias_size)

    XS, WS_ = cfg.x_stride, cfg.w_stride
    SPRX = XR // 16
    RPX = 1024 // XR
    shx = SPRX.bit_length() - 1
    A(f"v_lshrrev_b32 {v(vt[0])}, {shx}, {v(v_lane)}")
    A(f"v_and_b32 {v(vt[1])}, {SPRX-1}, {v(v_lane)}")
    A(f"s_mul_i32 {s(sT[0])}, {s(s_wave)}, {RPX*nX}")
    A(f"s_mov_b32 {s(sT[1])}, {XS}")
    ofrag = getattr(cfg, "x_layout", "row") == "ofrag"
    XADV = 4096 if ofrag else XR
    for u in range(nX):
        A(f"v_add_u32 {v(vt[2])}, {s(sT[0])}, {v(vt[0])}")
        if u:
            A(f"v_add_u32 {v(vt[2])}, {RPX*u}, {v(vt[2])}")
        if ofrag:
            A(f"v_mov_b32 {v(vt[4])}, {v(vt[2])}")
        A.xswz(vt[2], BK)
        A(f"v_xor_b32 {v(vt[2])}, {v(vt[2])}, {v(vt[1])}")
        if ofrag:
            A(f"v_lshrrev_b32 {v(vt[3])}, 1, {v(vt[2])}")
            A(f"v_lshlrev_b32 {v(vt[3])}, 10, {v(vt[3])}")
            A(f"v_and_b32 {v(vt[2])}, 1, {v(vt[2])}")
            A(f"v_lshlrev_b32 {v(vt[2])}, 9, {v(vt[2])}")
            A(f"v_add_u32 {v(vt[3])}, {v(vt[3])}, {v(vt[2])}")
            A(f"v_and_b32 {v(vt[2])}, 31, {v(vt[4])}")
            A(f"v_lshlrev_b32 {v(vt[2])}, 4, {v(vt[2])}")
            A(f"v_add_u32 {v(vt[3])}, {v(vt[3])}, {v(vt[2])}")
            A(f"v_lshrrev_b32 {v(vt[2])}, 5, {v(vt[4])}")
            A(f"v_lshlrev_b32 {v(vt[2])}, 15, {v(vt[2])}")
            A(f"v_add_u32 {v(vXd[u])}, {v(vt[3])}, {v(vt[2])}")
        else:
            A(f"v_lshlrev_b32 {v(vt[2])}, 4, {v(vt[2])}")
            A(f"v_mul_lo_u32 {v(vt[3])}, {v(vt[0])}, {s(sT[1])}")
            A(f"v_add_u32 {v(vXd[u])}, {v(vt[2])}, {v(vt[3])}")
    if ofrag:
        for u in range(nX):
            A(f"s_mul_i32 {s(sXo[u])}, {s(s_mblk)}, {(BM//32)*32768}")
    else:
        A(f"s_mul_i32 {s(sT[2])}, {s(s_mblk)}, {BM}")
        A(f"s_add_u32 {s(sT[2])}, {s(sT[2])}, {s(sT[0])}")
        for u in range(nX):
            A(f"s_add_u32 {s(sT[3])}, {s(sT[2])}, {RPX*u}")
            A(f"s_mul_i32 {s(sXo[u])}, {s(sT[3])}, {XS}")
            if cfg.x_col0:
                A(f"s_add_u32 {s(sXo[u])}, {s(sXo[u])}, {cfg.x_col0*2}")
    A(f"s_mul_i32 {s(sXl)}, {s(s_wave)}, {nX*1024}")
    SPR = RSW // 16
    RPI = 1024 // RSW
    sh = SPR.bit_length() - 1
    A(f"v_lshrrev_b32 {v(vt[0])}, {sh}, {v(v_lane)}")
    A(f"v_and_b32 {v(vt[1])}, {SPR-1}, {v(v_lane)}")
    if RSW == 256:
        A(f"v_and_b32 {v(vt[2])}, 3, {v(vt[0])}")
        A(f"v_lshlrev_b32 {v(vt[2])}, 2, {v(vt[2])}")
    else:
        A(f"v_lshrrev_b32 {v(vt[2])}, 1, {v(vt[0])}")
        A(f"v_and_b32 {v(vt[2])}, 1, {v(vt[2])}")
        A(f"v_lshlrev_b32 {v(vt[2])}, 2, {v(vt[2])}")
    A(f"v_xor_b32 {v(vt[1])}, {v(vt[1])}, {v(vt[2])}")
    A(f"v_lshlrev_b32 {v(vt[1])}, 4, {v(vt[1])}")
    A(f"s_mov_b32 {s(sT[1])}, {WS_}")
    A(f"v_mul_lo_u32 {v(vt[3])}, {v(vt[0])}, {s(sT[1])}")
    A(f"v_add_u32 {v(vWd)}, {v(vt[1])}, {v(vt[3])}")
    for u in range(nW):
        A(f"s_mul_i32 {s(sT[2])}, {s(s_wave)}, {nW*RPI}")
        A(f"s_add_u32 {s(sT[2])}, {s(sT[2])}, {u*RPI}")
        A(f"s_mul_i32 {s(sWo[u])}, {s(sT[2])}, {WS_}")
    A(f"s_mul_i32 {s(sWl)}, {s(s_wave)}, {nW*1024}")
    A(f"s_add_u32 {s(sWl)}, {s(sWl)}, {XB}")

    KROT = getattr(cfg, "krot", True)
    XLF = getattr(cfg, "x_load_flags", "")
    if KROT:
        A(f"s_mov_b32 {s(sCK[0])}, {XADV}")
        A(f"s_mov_b32 {s(sCK[1])}, {(XADV - KS*XADV) & 0xffffffff}")
        A(f"s_mov_b32 {s(sCK[2])}, {BK*WS_}")
        A(f"s_mov_b32 {s(sCK[3])}, {(BK*WS_ - KS*BK*WS_) & 0xffffffff}")
        A(f"s_mul_i32 {s(sT[0])}, {s(s_mblk)}, 3")
        A(f"s_add_u32 {s(sT[0])}, {s(sT[0])}, {s(s_nblk)}")
        A(f"s_lshl_b32 {s(sT[0])}, {s(sT[0])}, {1 if BK == 32 else 0}")
        A(f"s_and_b32 {s(s_kpos)}, {s(sT[0])}, {(1 << (KS.bit_length()-1)) - 1 if KS & (KS-1) == 0 else 0xffff}")
        if KS & (KS - 1):
            for _ in range(4):
                A(f"s_cmp_ge_u32 {s(s_kpos)}, {KS}")
                A(f"s_cselect_b32 {s(sT[1])}, {KS}, 0")
                A(f"s_sub_u32 {s(s_kpos)}, {s(s_kpos)}, {s(sT[1])}")
        A(f"s_mov_b32 {s(s_kposW)}, {s(s_kpos)}")
        A(f"s_mul_i32 {s(sT[1])}, {s(s_kpos)}, {XADV}")
        for u in range(nX):
            A(f"s_add_u32 {s(sXo[u])}, {s(sXo[u])}, {s(sT[1])}")
        A(f"s_mul_i32 {s(sT[1])}, {s(s_kpos)}, {BK*WS_}")
        for u in range(nW):
            A(f"s_add_u32 {s(sWo[u])}, {s(sWo[u])}, {s(sT[1])}")

    dma_log = []

    def dma_adv(which="xw"):
        if KROT:
            if "x" in which:
                A(f"s_add_u32 {s(s_kpos)}, {s(s_kpos)}, 1")
                A(f"s_cmp_eq_u32 {s(s_kpos)}, {KS}")
                A(f"s_cselect_b32 {s(sWrapX)}, {s(sCK[1])}, {s(sCK[0])}")
                A(f"s_cselect_b32 {s(s_kpos)}, 0, {s(s_kpos)}")
            if "w" in which:
                A(f"s_add_u32 {s(s_kposW)}, {s(s_kposW)}, 1")
                A(f"s_cmp_eq_u32 {s(s_kposW)}, {KS}")
                A(f"s_cselect_b32 {s(sWrapW)}, {s(sCK[3])}, {s(sCK[2])}")
                A(f"s_cselect_b32 {s(s_kposW)}, 0, {s(s_kposW)}")

    def dma_x(step):
        st = step % NST
        for u in range(nX):
            A(f"s_add_u32 m0, {s(sXl)}, {st*SST + u*1024}")
            A(f"s_nop 0")
            A(f"buffer_load_dwordx4 {v(vXd[u])}, {s(srdX,4)}, {s(sXo[u])} offen{XLF} lds")
            A(f"s_add_u32 {s(sXo[u])}, {s(sXo[u])}, {s(sWrapX) if KROT else XADV}")
            dma_log.append(step)

    def dma_w(step):
        st = step % NST
        for u in range(nW):
            A(f"s_add_u32 m0, {s(sWl)}, {st*SST + u*1024}")
            A(f"s_nop 0")
            A(f"buffer_load_dwordx4 {v(vWd)}, {s(srdW,4)}, {s(sWo[u])} offen lds")
            A(f"s_add_u32 {s(sWo[u])}, {s(sWo[u])}, {s(sWrapW) if KROT else BK*WS_}")
            dma_log.append(step)

    def dma_stage(step):
        dma_adv()
        dma_x(step)
        dma_w(step)

    def wait_stage(step):
        idx = max(i for i, t in enumerate(dma_log) if t == step)
        A(f"s_waitcnt vmcnt({len(dma_log) - idx - 1})")

    nbias_loads = 0
    if cfg.bias_karg is not None:
        A(f"v_lshlrev_b32 {v(vt[4])}, 3, {v(v_hh)}")
        A(f"s_mul_i32 {s(sT[4])}, {s(s_nblk)}, {BN*2}")
        A(f"s_mul_i32 {s(sT[5])}, {s(s_wn)}, {TN*64}")
        A(f"s_add_u32 {s(sT[4])}, {s(sT[4])}, {s(sT[5])}")
        btmp = [Xf[0][0], Xf[1][0]] if TM >= 1 else None
        for a_ in range(TN):
            for i in range(4):
                reg = (Wf[0][a_] + 2 * i) if i < 2 else (Wf[1][a_] + 2 * (i - 2))
                A(f"buffer_load_dwordx2 {v(reg,2)}, {v(vt[4])}, {s(srdB,4)}, {s(sT[4])} offen offset:{(32*a_+8*i)*2}")
                nbias_loads += 1
    npre = min(NST - 1, KS)
    if getattr(cfg, "pre_epilogue", None):
        cfg.BM, cfg.BN = BM, BN
        cfg.pre_epilogue(A, cfg)
    if getattr(cfg, "dep_wait", None):
        for st0 in range(npre):
            dma_adv("w")
            dma_w(st0)
        cfg.dep_wait(A, cfg)
        dma_log.clear()
        for st0 in range(npre):
            dma_adv("x")
            dma_x(st0)
    else:
        for st0 in range(npre):
            dma_stage(st0)

    A(f"s_mul_i32 {s(sT[0])}, {s(s_wm)}, {TM*32*XR}")
    A(f"v_mul_u32_u24 {v(vt[0])}, {XR}, {v(v_tl)}")
    A(f"v_add_u32 {v(vt[0])}, {s(sT[0])}, {v(vt[0])}")
    A(f"v_mov_b32 {v(vt[1])}, {v(v_tl)}")
    A.xswz(vt[1], BK)
    A(f"s_lshl_b32 {s(sT[1])}, {s(s_wk)}, 1")
    A(f"v_add_u32 {v(vt[2])}, {s(sT[1])}, {v(v_hh)}")
    for tt in range(NT):
        A(f"v_add_u32 {v(vt[3])}, {2*WK*tt}, {v(vt[2])}")
        A(f"v_xor_b32 {v(vt[3])}, {v(vt[3])}, {v(vt[1])}")
        A(f"v_lshlrev_b32 {v(vt[3])}, 4, {v(vt[3])}")
        A(f"v_add_u32 {v(vXa[tt])}, {v(vt[0])}, {v(vt[3])}")
    A(f"v_and_b32 {v(vt[0])}, 15, {v(v_lane)}")
    A(f"v_lshrrev_b32 {v(vt[0])}, 2, {v(vt[0])}")
    A(f"v_mul_u32_u24 {v(vt[1])}, {w_hhcoef(mode)}, {v(v_hh)}")
    A(f"v_add_u32 {v(vt[1])}, {v(vt[1])}, {v(vt[0])}")
    if WK > 1:
        for tt in range(NT):
            for wk in range(WK):
                for a2 in range(2):
                    assert w_const(mode, WK * tt + wk, a2) == w_const(mode, WK * tt, a2) + w_const(mode, wk, 0)
        A(f"s_mov_b32 {s(sT[0])}, 0")
        for wk in range(1, WK):
            A(f"s_cmp_eq_u32 {s(s_wk)}, {wk}")
            A(f"s_cselect_b32 {s(sT[0])}, {w_const(mode, wk, 0)}, {s(sT[0])}")
        A(f"v_add_u32 {v(vt[1])}, {s(sT[0])}, {v(vt[1])}")
    A(f"v_mul_u32_u24 {v(vt[1])}, {RSW}, {v(vt[1])}")
    if RSW == 256:
        A(f"v_lshlrev_b32 {v(vt[2])}, 2, {v(vt[0])}")
    else:
        A(f"v_lshrrev_b32 {v(vt[2])}, 1, {v(vt[0])}")
        A(f"v_lshlrev_b32 {v(vt[2])}, 2, {v(vt[2])}")
    A(f"v_lshrrev_b32 {v(vt[3])}, 4, {v(v_lane)}")
    A(f"v_and_b32 {v(vt[3])}, 1, {v(vt[3])}")
    A(f"v_lshlrev_b32 {v(vt[3])}, 1, {v(vt[3])}")
    A(f"v_and_b32 {v(vt[4])}, 3, {v(v_lane)}")
    A(f"v_lshrrev_b32 {v(vt[5])}, 1, {v(vt[4])}")
    A(f"v_add_u32 {v(vt[3])}, {v(vt[3])}, {v(vt[5])}")
    A(f"s_mul_i32 {s(sT[0])}, {s(s_wn)}, {TN*4}")
    A(f"v_add_u32 {v(vt[3])}, {s(sT[0])}, {v(vt[3])}")
    A(f"v_and_b32 {v(vt[4])}, 1, {v(vt[4])}")
    A(f"v_lshlrev_b32 {v(vt[4])}, 3, {v(vt[4])}")
    A(f"v_add_u32 {v(vt[4])}, {v(vt[4])}, {v(vt[1])}")
    A(f"v_add_u32 {v(vt[4])}, {XB}, {v(vt[4])}")
    for a_ in range(TN):
        A(f"v_add_u32 {v(vt[5])}, {4*a_}, {v(vt[3])}")
        A(f"v_xor_b32 {v(vt[5])}, {v(vt[5])}, {v(vt[2])}")
        A(f"v_lshlrev_b32 {v(vt[5])}, 4, {v(vt[5])}")
        A(f"v_add_u32 {v(vWa[a_])}, {v(vt[4])}, {v(vt[5])}")

    if cfg.bias_karg is not None:
        A(f"s_waitcnt vmcnt({len(dma_log)})")
        if WK > 1:
            lab = A.newlabel("Lz")
            A(f"s_cmp_eq_u32 {s(s_wk)}, 0")
            A(f"s_cbranch_scc1 {lab}")
            for a_ in range(TN):
                for i in range(4):
                    reg = (Wf[0][a_] + 2 * i) if i < 2 else (Wf[1][a_] + 2 * (i - 2))
                    A(f"v_mov_b32 {v(reg)}, 0")
                    A(f"v_mov_b32 {v(reg+1)}, 0")
            A.label(lab)
        for a_ in range(TN):
            for b in range(TM):
                for i in range(4):
                    reg = (Wf[0][a_] + 2 * i) if i < 2 else (Wf[1][a_] + 2 * (i - 2))
                    A(f"v_lshlrev_b32 {v(acc[a_][b]+4*i)}, 16, {v(reg)}")
                    A(f"v_and_b32 {v(acc[a_][b]+4*i+1)}, 0xffff0000, {v(reg)}")
                    A(f"v_lshlrev_b32 {v(acc[a_][b]+4*i+2)}, 16, {v(reg+1)}")
                    A(f"v_and_b32 {v(acc[a_][b]+4*i+3)}, 0xffff0000, {v(reg+1)}")
    else:
        for a_ in range(TN):
            for b in range(TM):
                for r in range(16):
                    A(f"v_mov_b32 {v(acc[a_][b]+r)}, 0")

    cur_base = [0]

    def set_stage(st):
        d = st * SST - cur_base[0]
        if d == 0:
            return
        for r in vXa + vWa:
            if d > 0:
                A(f"v_add_u32 {v(r)}, {d}, {v(r)}")
            else:
                A(f"v_subrev_u32 {v(r)}, {-d}, {v(r)}")
        cur_base[0] = st * SST

    def read_frags(par, tt):
        tbase = WK * tt
        for b in range(TM):
            A(f"ds_read_b128 {v(Xf[par][b],4)}, {v(vXa[tt])} offset:{b*32*XR}")
        for a_ in range(TN):
            for a2 in range(2):
                off = w_const(mode, tbase, a2) * RSW
                A(f"ds_read_b64_tr_b16 {v(Wf[par][a_]+2*a2,2)}, {v(vWa[a_])} offset:{off}")

    def mfmas(par):
        for a_ in range(TN):
            for b in range(TM):
                if cfg.orient == "T":
                    A(f"v_mfma_f32_32x32x16_bf16 {v(acc[a_][b],16)}, {v(Wf[par][a_],4)}, {v(Xf[par][b],4)}, {v(acc[a_][b],16)}")
                else:
                    A(f"v_mfma_f32_32x32x16_bf16 {v(acc[a_][b],16)}, {v(Xf[par][b],4)}, {v(Wf[par][a_],4)}, {v(acc[a_][b],16)}")

    A.c("---- wait for stage 0")
    wait_stage(0)
    A("s_barrier")
    if getattr(cfg, "loop_prio", None) is not None:
        A(f"s_setprio {cfg.loop_prio}")
    stamp(3 if os.environ.get("FINE") else 1)
    par = 0
    read_frags(par, 0)
    for st_ in range(KS):
        A.c(f"---- k-step {st_}")
        for tt in range(NT):
            last_tt = tt == NT - 1
            sync_here = (tt == (NT - 1) // 2 if NT > 1 else True)
            if sync_here and st_ + 1 < KS:
                wait_stage(st_ + 1)
                A("s_barrier")
                if st_ + NST - 1 < KS:
                    dma_stage(st_ + NST - 1)
            npar = par ^ 1
            issued = False
            if not last_tt:
                read_frags(npar, tt + 1)
                issued = True
            elif st_ + 1 < KS:
                set_stage((st_ + 1) % NST)
                read_frags(npar, 0)
                issued = True
            A(f"s_waitcnt lgkmcnt({nlds if issued else 0})")
            mfmas(par)
            par = npar
    A.nop(16)
    if not os.environ.get("FINE"):
        stamp(2)

    if WK > 1:
        tile_bytes = TM * TN * 4096
        A("s_barrier")
        lab_red = A.newlabel("Lred")
        lab_done = A.newlabel("Lwdone")
        A(f"s_lshr_b32 {s(sT[0])}, {s(s_wave)}, {WK.bit_length()-1}")
        A(f"s_mul_i32 {s(sT[0])}, {s(sT[0])}, {(WK-1)*tile_bytes}")
        A(f"v_lshlrev_b32 {v(vt[0])}, 4, {v(v_lane)}")
        A(f"v_add_u32 {v(vt[0])}, {s(sT[0])}, {v(vt[0])}")
        A(f"s_cmp_eq_u32 {s(s_wk)}, 0")
        A(f"s_cbranch_scc1 {lab_red}")
        A(f"s_sub_u32 {s(sT[1])}, {s(s_wk)}, 1")
        A(f"s_mul_i32 {s(sT[1])}, {s(sT[1])}, {tile_bytes}")
        A(f"v_add_u32 {v(vt[0])}, {s(sT[1])}, {v(vt[0])}")
        k = 0
        for a_ in range(TN):
            for b in range(TM):
                for q in range(4):
                    A(f"ds_write_b128 {v(vt[0])}, {v(acc[a_][b]+4*q,4)} offset:{k*1024}")
                    k += 1
        A("s_waitcnt lgkmcnt(0)")
        A("s_barrier")
        if getattr(cfg, "keep", False):
            A(f"s_branch {lab_done}")
        else:
            A("s_endpgm")
        A.label(lab_red)
        A("s_barrier")
        tmp = Xf[0][0]
        for j in range(WK - 1):
            k = 0
            for a_ in range(TN):
                for b in range(TM):
                    for q in range(4):
                        A(f"ds_read_b128 {v(tmp + 4*(k&1),4)}, {v(vt[0])} offset:{j*tile_bytes + k*1024}")
                        A("s_waitcnt lgkmcnt(0)")
                        for e in range(4):
                            A(f"v_add_f32 {v(acc[a_][b]+4*q+e)}, {v(acc[a_][b]+4*q+e)}, {v(tmp+4*(k&1)+e)}")
                        k += 1
        if getattr(cfg, "keep", False):
            A.label(lab_done)
    cfg.BM, cfg.BN = BM, BN
    cfg.lds_bytes = NST * SST
    if getattr(cfg, "keep", False):
        A("s_waitcnt lgkmcnt(0)")
        A("s_barrier")
        return V.hi, S.hi
    if not os.environ.get("FINE"):
        stamp(3)
    cfg.epilogue(A, cfg)
    if diag is not None:
        stamp(4)
        stamp(6)
        A.add64(sPX, sPWS, diag)
        A.srd(srdX, sPX, 0x100000)
        A(f"s_lshl_b32 {s(sT[0])}, s2, 3")
        A(f"s_add_u32 {s(sT[0])}, {s(sT[0])}, {s(s_wave)}")
        A(f"s_lshl_b32 {s(sT[0])}, {s(sT[0])}, 6")
        A(f"v_mov_b32 {v(vt[1])}, 0")
        A("s_mov_b64 exec, 1")
        for k in range(7):
            A(f"v_mov_b32 {v(vt[0])}, {s(sStamp[k])}")
            A(f"buffer_store_dword {v(vt[0])}, {v(vt[1])}, {s(srdX,4)}, {s(sT[0])} offen offset:{4*k}")
    A("s_endpgm")
    return V.hi, S.hi


def _store_temps(cfg):
    Xf, Wf = cfg.vregs["Xf"], cfg.vregs["Wf"]
    t = [Xf[0][0], Xf[1][0], Wf[0][0], Wf[1][0]]
    return t


def epi_qk(A, cfg):
    vr, sr = cfg.vregs, cfg.sregs
    acc, v_lane, vt = vr["acc"], vr["v_lane"], vr["vt"]
    sT, srdD = sr["sT"], sr["srdD"]
    TM, TN = cfg.TM, cfg.TN
    tq = _store_temps(cfg)
    A(f"s_cmp_lt_u32 {s(sr['s_nblk'])}, 4")
    A(f"s_cselect_b32 {s(sT[5])}, 0x{f32bits(QSCALE):08x}, 1.0")
    A(f"s_lshr_b32 {s(sT[0])}, {s(sr['s_nblk'])}, 2")
    A(f"s_lshl_b32 {s(sT[0])}, {s(sT[0])}, 21")
    A(f"s_and_b32 {s(sT[1])}, {s(sr['s_nblk'])}, 3")
    A(f"s_lshl_b32 {s(sT[1])}, {s(sT[1])}, 3")
    A(f"s_mul_i32 {s(sT[2])}, {s(sr['s_wn'])}, {TN*2}")
    A(f"s_add_u32 {s(sT[1])}, {s(sT[1])}, {s(sT[2])}")
    A(f"s_lshl_b32 {s(sT[1])}, {s(sT[1])}, 16")
    A(f"s_add_u32 {s(sT[0])}, {s(sT[0])}, {s(sT[1])}")
    A(f"s_mul_i32 {s(sT[1])}, {s(sr['s_mblk'])}, {cfg.BM//32}")
    A(f"s_mul_i32 {s(sT[2])}, {s(sr['s_wm'])}, {TM}")
    A(f"s_add_u32 {s(sT[1])}, {s(sT[1])}, {s(sT[2])}")
    A(f"s_lshl_b32 {s(sT[1])}, {s(sT[1])}, 10")
    A(f"s_add_u32 {s(sT[0])}, {s(sT[0])}, {s(sT[1])}")
    A(f"v_lshlrev_b32 {v(vt[0])}, 4, {v(v_lane)}")
    n = 0
    for a_ in range(TN):
        for b in range(TM):
            for hs in range(2):
                base = acc[a_][b] + 8 * hs
                for r in range(8):
                    A(f"v_mul_f32 {v(base+r)}, {s(sT[5])}, {v(base+r)}")
                t = tq[n % 4]
                for p in range(4):
                    A(f"v_cvt_pk_bf16_f32 {v(t+p)}, {v(base+2*p)}, {v(base+2*p+1)}")
                off = ((2 * a_ + hs) * 65536 + b * 1024)
                A(f"s_add_u32 {s(sT[1])}, {s(sT[0])}, {off}")
                A(f"buffer_store_dwordx4 {v(t,4)}, {v(vt[0])}, {s(srdD,4)}, {s(sT[1])} offen{STF}")
                n += 1


def epi_v(A, cfg):
    vr, sr = cfg.vregs, cfg.sregs
    acc, v_lane, vt, v_hh = vr["acc"], vr["v_lane"], vr["vt"], vr["v_hh"]
    sT, srdD = sr["sT"], sr["srdD"]
    TM, TN = cfg.TM, cfg.TN
    tq = _store_temps(cfg)
    A(f"s_lshl_b32 {s(sT[0])}, {s(sr['s_nblk'])}, 3")
    A(f"s_mul_i32 {s(sT[1])}, {s(sr['s_wn'])}, {TN*2}")
    A(f"s_add_u32 {s(sT[0])}, {s(sT[0])}, {s(sT[1])}")
    A(f"s_lshl_b32 {s(sT[0])}, {s(sT[0])}, 16")
    A(f"s_mul_i32 {s(sT[1])}, {s(sr['s_mblk'])}, {cfg.BM//16}")
    A(f"s_mul_i32 {s(sT[2])}, {s(sr['s_wm'])}, {TM*2}")
    A(f"s_add_u32 {s(sT[1])}, {s(sT[1])}, {s(sT[2])}")
    A(f"s_lshl_b32 {s(sT[1])}, {s(sT[1])}, 9")
    A(f"s_add_u32 {s(sT[0])}, {s(sT[0])}, {s(sT[1])}")
    A(f"v_lshrrev_b32 {v(vt[1])}, 4, {v(v_lane)}")
    A(f"v_and_b32 {v(vt[1])}, 1, {v(vt[1])}")
    A(f"v_lshlrev_b32 {v(vt[1])}, 16, {v(vt[1])}")
    A(f"v_and_b32 {v(vt[2])}, 15, {v(v_lane)}")
    A(f"v_lshlrev_b32 {v(vt[2])}, 4, {v(vt[2])}")
    A(f"v_add_u32 {v(vt[1])}, {v(vt[1])}, {v(vt[2])}")
    A(f"v_lshlrev_b32 {v(vt[2])}, 8, {v(v_hh)}")
    A(f"v_add_u32 {v(vt[0])}, {v(vt[1])}, {v(vt[2])}")
    n = 0
    for a_ in range(TN):
        for b in range(TM):
            for gs in range(2):
                base = acc[a_][b] + 8 * gs
                t = tq[n % 4]
                for p in range(4):
                    A(f"v_cvt_pk_bf16_f32 {v(t+p)}, {v(base+2*p)}, {v(base+2*p+1)}")
                off = (2 * a_) * 65536 + (2 * b + gs) * 512
                A(f"s_add_u32 {s(sT[1])}, {s(sT[0])}, {off}")
                A(f"buffer_store_dwordx4 {v(t,4)}, {v(vt[0])}, {s(srdD,4)}, {s(sT[1])} offen{STF}")
                n += 1


def epi_h(A, cfg):
    vr, sr = cfg.vregs, cfg.sregs
    acc, v_tl, vt, v_hh = vr["acc"], vr["v_tl"], vr["vt"], vr["v_hh"]
    sT, srdD = sr["sT"], sr["srdD"]
    TM, TN = cfg.TM, cfg.TN
    Xf, Wf = vr["Xf"], vr["Wf"]
    HS = F * 2
    A(f"s_mul_i32 {s(sT[0])}, {s(sr['s_mblk'])}, {cfg.BM}")
    A(f"s_mul_i32 {s(sT[1])}, {s(sr['s_wm'])}, {TM*32}")
    A(f"s_add_u32 {s(sT[0])}, {s(sT[0])}, {s(sT[1])}")
    A(f"s_mul_i32 {s(sT[0])}, {s(sT[0])}, {HS}")
    A(f"s_mul_i32 {s(sT[1])}, {s(sr['s_nblk'])}, {cfg.BN*2}")
    A(f"s_add_u32 {s(sT[0])}, {s(sT[0])}, {s(sT[1])}")
    A(f"s_mul_i32 {s(sT[1])}, {s(sr['s_wn'])}, {TN*64}")
    A(f"s_add_u32 {s(sT[0])}, {s(sT[0])}, {s(sT[1])}")
    A(f"s_mov_b32 {s(sT[2])}, {HS}")
    A(f"v_mul_lo_u32 {v(vt[0])}, {v(v_tl)}, {s(sT[2])}")
    A(f"v_lshlrev_b32 {v(vt[1])}, 5, {v(v_hh)}")
    A(f"v_add_u32 {v(vt[0])}, {v(vt[0])}, {v(vt[1])}")
    packs = [(Xf[0][0], Xf[1][0]), (Wf[0][0], Wf[1][0])]
    n = 0
    for a_ in range(TN):
        for b in range(TM):
            base = acc[a_][b]
            q0, q1 = packs[n % 2]
            for r in range(16):
                A(f"v_max_f32 {v(base+r)}, 0, {v(base+r)}")
                A(f"v_mul_f32 {v(base+r)}, {v(base+r)}, {v(base+r)}")
            for p in range(4):
                A(f"v_cvt_pk_bf16_f32 {v(q0+p)}, {v(base+2*p)}, {v(base+2*p+1)}")
            for p in range(4):
                A(f"v_cvt_pk_bf16_f32 {v(q1+p)}, {v(base+8+2*p)}, {v(base+8+2*p+1)}")
            off = 32 * b * HS + 32 * a_ * 2
            A(f"s_add_u32 {s(sT[1])}, {s(sT[0])}, {off}")
            A(f"buffer_store_dwordx4 {v(q0,4)}, {v(vt[0])}, {s(srdD,4)}, {s(sT[1])} offen{STF}")
            A(f"buffer_store_dwordx4 {v(q1,4)}, {v(vt[0])}, {s(srdD,4)}, {s(sT[1])} offen offset:16{STF}")
            n += 1


def epi_b(A, cfg):
    vr, sr = cfg.vregs, cfg.sregs
    acc, v_lane, vt = vr["acc"], vr["v_lane"], vr["vt"]
    sT, srdD = sr["sT"], sr["srdD"]
    TM, TN = cfg.TM, cfg.TN
    Xf, Wf = vr["Xf"], vr["Wf"]
    A(f"s_mul_i32 {s(sT[0])}, {s(sr['s_mblk'])}, {cfg.BM//32}")
    A(f"s_mul_i32 {s(sT[1])}, {s(sr['s_wm'])}, {TM}")
    A(f"s_add_u32 {s(sT[0])}, {s(sT[0])}, {s(sT[1])}")
    A(f"s_lshl_b32 {s(sT[0])}, {s(sT[0])}, 4")
    A(f"s_mul_i32 {s(sT[1])}, {s(sr['s_nblk'])}, {cfg.BN//32}")
    A(f"s_add_u32 {s(sT[0])}, {s(sT[0])}, {s(sT[1])}")
    A(f"s_mul_i32 {s(sT[1])}, {s(sr['s_wn'])}, {TN}")
    A(f"s_add_u32 {s(sT[0])}, {s(sT[0])}, {s(sT[1])}")
    A(f"s_lshl_b32 {s(sT[0])}, {s(sT[0])}, 11")
    A(f"v_lshlrev_b32 {v(vt[0])}, 5, {v(v_lane)}")
    packs = [(Xf[0][0], Xf[1][0]), (Wf[0][0], Wf[1][0])]
    n = 0
    for a_ in range(TN):
        for b in range(TM):
            base = acc[a_][b]
            q0, q1 = packs[n % 2]
            for p in range(4):
                A(f"v_cvt_pk_bf16_f32 {v(q0+p)}, {v(base+2*p)}, {v(base+2*p+1)}")
            for p in range(4):
                A(f"v_cvt_pk_bf16_f32 {v(q1+p)}, {v(base+8+2*p)}, {v(base+8+2*p+1)}")
            off = (b * 16 + a_) * 2048
            A(f"s_add_u32 {s(sT[1])}, {s(sT[0])}, {off}")
            A(f"buffer_store_dwordx4 {v(q0,4)}, {v(vt[0])}, {s(srdD,4)}, {s(sT[1])} offen{STF}")
            A(f"buffer_store_dwordx4 {v(q1,4)}, {v(vt[0])}, {s(srdD,4)}, {s(sT[1])} offen offset:16{STF}")
            n += 1


def pre_out(A, cfg):
    vr, sr = cfg.vregs, cfg.sregs
    v_lane, v_tl, vt = vr["v_lane"], vr["v_tl"], vr["vt"]
    sT, srdB, sPWS = sr["sT"], sr["srdB"], sr["sPWS"]
    TM, TN = cfg.TM, cfg.TN
    cfg.bregs = {}
    A.add64(sT[0], sPWS, WS_B)
    A.srd(srdB, sT[0], WS_G + S_TOK * 4 - WS_B)
    A(f"v_lshlrev_b32 {v(vt[0])}, 5, {v(v_lane)}")
    A(f"v_lshlrev_b32 {v(vt[1])}, 2, {v(v_tl)}")
    A(f"s_mul_i32 {s(sT[0])}, {s(sr['s_mblk'])}, {cfg.BM//32}")
    A(f"s_mul_i32 {s(sT[1])}, {s(sr['s_wm'])}, {TM}")
    A(f"s_add_u32 {s(sT[0])}, {s(sT[0])}, {s(sT[1])}")
    A(f"s_mul_i32 {s(sT[1])}, {s(sr['s_nblk'])}, {cfg.BN//32}")
    A(f"s_mul_i32 {s(sT[2])}, {s(sr['s_wn'])}, {TN}")
    A(f"s_add_u32 {s(sT[1])}, {s(sT[1])}, {s(sT[2])}")
    for a_ in range(TN):
        for b in range(TM):
            bq = cfg.V.alloc(8, 4)
            gq = cfg.V.alloc()
            cfg.bregs[(a_, b)] = (bq, gq)
            A(f"s_add_u32 {s(sT[2])}, {s(sT[0])}, {b}")
            A(f"s_lshl_b32 {s(sT[3])}, {s(sT[2])}, 4")
            A(f"s_add_u32 {s(sT[3])}, {s(sT[3])}, {s(sT[1])}")
            A(f"s_add_u32 {s(sT[3])}, {s(sT[3])}, {a_}")
            A(f"s_lshl_b32 {s(sT[3])}, {s(sT[3])}, 11")
            A(f"buffer_load_dwordx4 {v(bq,4)}, {v(vt[0])}, {s(srdB,4)}, {s(sT[3])} offen")
            A(f"buffer_load_dwordx4 {v(bq+4,4)}, {v(vt[0])}, {s(srdB,4)}, {s(sT[3])} offen offset:16")
            A(f"s_lshl_b32 {s(sT[4])}, {s(sT[2])}, 7")
            A(f"s_add_u32 {s(sT[4])}, {s(sT[4])}, {WS_G - WS_B}")
            A(f"buffer_load_dword {v(gq)}, {v(vt[1])}, {s(srdB,4)}, {s(sT[4])} offen")


def epi_out(A, cfg):
    vr, sr = cfg.vregs, cfg.sregs
    acc, v_tl, v_hh, vt = vr["acc"], vr["v_tl"], vr["v_hh"], vr["vt"]
    sT, srdD = sr["sT"], sr["srdD"]
    TM, TN = cfg.TM, cfg.TN
    Wf = vr["Wf"]
    oq = [Wf[0][0], Wf[1][0]]
    A(f"v_lshlrev_b32 {v(vt[2])}, 10, {v(v_tl)}")
    A(f"v_lshlrev_b32 {v(vt[3])}, 3, {v(v_hh)}")
    A(f"v_add_u32 {v(vt[2])}, {v(vt[2])}, {v(vt[3])}")
    A(f"s_mul_i32 {s(sT[0])}, {s(sr['s_mblk'])}, {cfg.BM//32}")
    A(f"s_mul_i32 {s(sT[1])}, {s(sr['s_wm'])}, {TM}")
    A(f"s_add_u32 {s(sT[0])}, {s(sT[0])}, {s(sT[1])}")
    A(f"s_mul_i32 {s(sT[1])}, {s(sr['s_nblk'])}, {cfg.BN//32}")
    A(f"s_mul_i32 {s(sT[2])}, {s(sr['s_wn'])}, {TN}")
    A(f"s_add_u32 {s(sT[1])}, {s(sT[1])}, {s(sT[2])}")
    for a_ in range(TN):
        for b in range(TM):
            base = acc[a_][b]
            bq, gq = cfg.bregs[(a_, b)]
            A(f"s_add_u32 {s(sT[2])}, {s(sT[0])}, {b}")
            A(f"s_lshl_b32 {s(sT[4])}, {s(sT[2])}, 15")
            A(f"s_add_u32 {s(sT[5])}, {s(sT[1])}, {a_}")
            A(f"s_lshl_b32 {s(sT[5])}, {s(sT[5])}, 6")
            A(f"s_add_u32 {s(sT[4])}, {s(sT[4])}, {s(sT[5])}")
            A(f"v_sub_f32 {v(vt[5])}, 1.0, {v(gq)}")
            A(f"v_cvt_pk_bf16_f32 {v(vt[5])}, {v(vt[5])}, {v(vt[5])}")
            A(f"v_lshlrev_b32 {v(vt[5])}, 16, {v(vt[5])}")
            for p in range(8):
                r0, r1 = base + 2 * p, base + 2 * p + 1
                braw = bq + p
                A(f"v_cvt_pk_bf16_f32 {v(vt[3])}, {v(r0)}, {v(r1)}")
                A(f"v_lshlrev_b32 {v(r0)}, 16, {v(vt[3])}")
                A(f"v_and_b32 {v(r1)}, 0xffff0000, {v(vt[3])}")
                A(f"v_mul_f32 {v(r0)}, {v(r0)}, {v(gq)}")
                A(f"v_mul_f32 {v(r1)}, {v(r1)}, {v(gq)}")
                A(f"v_cvt_pk_bf16_f32 {v(vt[3])}, {v(r0)}, {v(r1)}")
                A(f"v_lshlrev_b32 {v(r0)}, 16, {v(braw)}")
                A(f"v_and_b32 {v(r1)}, 0xffff0000, {v(braw)}")
                A(f"v_mul_f32 {v(r0)}, {v(r0)}, {v(vt[5])}")
                A(f"v_mul_f32 {v(r1)}, {v(r1)}, {v(vt[5])}")
                A(f"v_cvt_pk_bf16_f32 {v(braw)}, {v(r0)}, {v(r1)}")
                A(f"v_lshlrev_b32 {v(r0)}, 16, {v(vt[3])}")
                A(f"v_and_b32 {v(r1)}, 0xffff0000, {v(vt[3])}")
                A(f"v_lshlrev_b32 {v(vt[3])}, 16, {v(braw)}")
                A(f"v_add_f32 {v(r0)}, {v(r0)}, {v(vt[3])}")
                A(f"v_and_b32 {v(vt[3])}, 0xffff0000, {v(braw)}")
                A(f"v_add_f32 {v(r1)}, {v(r1)}, {v(vt[3])}")
                A(f"v_cvt_pk_bf16_f32 {v(oq[p>>2]+(p&3))}, {v(r0)}, {v(r1)}")
            for i in range(4):
                q = oq[i >> 1] + 2 * (i & 1)
                A(f"buffer_store_dwordx2 {v(q,2)}, {v(vt[2])}, {s(srdD,4)}, {s(sT[4])} offen offset:{16*i}")


def make_dep_wait(target, limit=200000):
    def hook(A, cfg):
        vr, sr = cfg.vregs, cfg.sregs
        vt, sT, srdB = vr["vt"], sr["sT"], sr["srdB"]
        A.c("---- wait for the attention workgroups of this 256-token block")
        A(f"s_load_dwordx2 {s(sT[0],2)}, s[0:1], {KA_DBG}")
        A("s_waitcnt lgkmcnt(0)")
        A.srd(srdB, sT[0], 256)
        A(f"s_lshr_b32 {s(sT[2])}, {s(sr['s_mblk'])}, 2")
        A(f"s_lshl_b32 {s(sT[2])}, {s(sT[2])}, 2")
        A(f"v_mov_b32 {v(vt[0])}, 0")
        A(f"s_mov_b32 {s(sT[3])}, 0")
        lp, ld = A.newlabel("Lpoll"), A.newlabel("Lpdone")
        A(f"s_cmp_lg_u32 {s(sr['s_wave'])}, 0")
        A(f"s_cbranch_scc1 {ld}")
        A.label(lp)
        A(f"buffer_load_dword {v(vt[1])}, {v(vt[0])}, {s(srdB,4)}, {s(sT[2])} offen sc1")
        A("s_waitcnt vmcnt(0)")
        A(f"v_readfirstlane_b32 {s(sT[4])}, {v(vt[1])}")
        A("s_nop 3")
        A(f"s_cmp_ge_u32 {s(sT[4])}, {target}")
        A(f"s_cbranch_scc1 {ld}")
        A("s_sleep 24")
        A(f"s_add_u32 {s(sT[3])}, {s(sT[3])}, 1")
        A(f"s_cmp_lt_u32 {s(sT[3])}, {limit}")
        A(f"s_cbranch_scc1 {lp}")
        A.label(ld)
        A("s_waitcnt vmcnt(0)")
        A("s_barrier")
        A("buffer_inv sc1")
        A("s_waitcnt vmcnt(0)")
    return hook


def pre_final(A, cfg):
    vr, sr = cfg.vregs, cfg.sregs
    v_tl, vt = vr["v_tl"], vr["vt"]
    sT, srdB, sPWS = sr["sT"], sr["srdB"], sr["sPWS"]
    TM = cfg.TM
    A.add64(sT[0], sPWS, WS_G)
    A.srd(srdB, sT[0], S_TOK * 4)
    A(f"v_lshlrev_b32 {v(vt[1])}, 2, {v(v_tl)}")
    A(f"s_mul_i32 {s(sT[0])}, {s(sr['s_mblk'])}, {cfg.BM}")
    A(f"s_mul_i32 {s(sT[1])}, {s(sr['s_wm'])}, {TM*32}")
    A(f"s_add_u32 {s(sT[0])}, {s(sT[0])}, {s(sT[1])}")
    A(f"s_lshl_b32 {s(sT[0])}, {s(sT[0])}, 2")
    cfg.gregs = []
    for b in range(TM):
        gq = cfg.V.alloc()
        cfg.gregs.append(gq)
        A(f"buffer_load_dword {v(gq)}, {v(vt[1])}, {s(srdB,4)}, {s(sT[0])} offen offset:{128*b}")


def epi_final(A, cfg):
    vr, sr = cfg.vregs, cfg.sregs
    acc, v_tl, v_hh, vt = vr["acc"], vr["v_tl"], vr["v_hh"], vr["vt"]
    sT, srdD = sr["sT"], sr["srdD"]
    TM, TN = cfg.TM, cfg.TN
    Wf = vr["Wf"]
    accb = cfg.acc_b
    oq = [Wf[0][0], Wf[1][0]]
    A(f"v_lshlrev_b32 {v(vt[2])}, 10, {v(v_tl)}")
    A(f"v_lshlrev_b32 {v(vt[3])}, 3, {v(v_hh)}")
    A(f"v_add_u32 {v(vt[2])}, {v(vt[2])}, {v(vt[3])}")
    A(f"s_mul_i32 {s(sT[0])}, {s(sr['s_mblk'])}, {cfg.BM//32}")
    A(f"s_mul_i32 {s(sT[1])}, {s(sr['s_wm'])}, {TM}")
    A(f"s_add_u32 {s(sT[0])}, {s(sT[0])}, {s(sT[1])}")
    A(f"s_mul_i32 {s(sT[1])}, {s(sr['s_nblk'])}, {cfg.BN//32}")
    A(f"s_mul_i32 {s(sT[2])}, {s(sr['s_wn'])}, {TN}")
    A(f"s_add_u32 {s(sT[1])}, {s(sT[1])}, {s(sT[2])}")
    for a_ in range(TN):
        for b in range(TM):
            base = acc[a_][b]
            bb = accb[a_][b]
            gq = cfg.gregs[b]
            A(f"s_add_u32 {s(sT[2])}, {s(sT[0])}, {b}")
            A(f"s_lshl_b32 {s(sT[4])}, {s(sT[2])}, 15")
            A(f"s_add_u32 {s(sT[5])}, {s(sT[1])}, {a_}")
            A(f"s_lshl_b32 {s(sT[5])}, {s(sT[5])}, 6")
            A(f"s_add_u32 {s(sT[4])}, {s(sT[4])}, {s(sT[5])}")
            A(f"v_sub_f32 {v(vt[5])}, 1.0, {v(gq)}")
            A(f"v_cvt_pk_bf16_f32 {v(vt[5])}, {v(vt[5])}, {v(vt[5])}")
            A(f"v_lshlrev_b32 {v(vt[5])}, 16, {v(vt[5])}")
            for p in range(8):
                r0, r1 = base + 2 * p, base + 2 * p + 1
                b0, b1 = bb + 2 * p, bb + 2 * p + 1
                A(f"v_cvt_pk_bf16_f32 {v(vt[3])}, {v(r0)}, {v(r1)}")
                A(f"v_lshlrev_b32 {v(r0)}, 16, {v(vt[3])}")
                A(f"v_and_b32 {v(r1)}, 0xffff0000, {v(vt[3])}")
                A(f"v_mul_f32 {v(r0)}, {v(r0)}, {v(gq)}")
                A(f"v_mul_f32 {v(r1)}, {v(r1)}, {v(gq)}")
                A(f"v_cvt_pk_bf16_f32 {v(vt[3])}, {v(r0)}, {v(r1)}")
                A(f"v_cvt_pk_bf16_f32 {v(vt[4])}, {v(b0)}, {v(b1)}")
                A(f"v_lshlrev_b32 {v(b0)}, 16, {v(vt[4])}")
                A(f"v_and_b32 {v(b1)}, 0xffff0000, {v(vt[4])}")
                A(f"v_mul_f32 {v(b0)}, {v(b0)}, {v(vt[5])}")
                A(f"v_mul_f32 {v(b1)}, {v(b1)}, {v(vt[5])}")
                A(f"v_cvt_pk_bf16_f32 {v(vt[4])}, {v(b0)}, {v(b1)}")
                A(f"v_lshlrev_b32 {v(r0)}, 16, {v(vt[3])}")
                A(f"v_and_b32 {v(r1)}, 0xffff0000, {v(vt[3])}")
                A(f"v_lshlrev_b32 {v(b0)}, 16, {v(vt[4])}")
                A(f"v_and_b32 {v(b1)}, 0xffff0000, {v(vt[4])}")
                A(f"v_add_f32 {v(r0)}, {v(r0)}, {v(b0)}")
                A(f"v_add_f32 {v(r1)}, {v(r1)}, {v(b1)}")
                A(f"v_cvt_pk_bf16_f32 {v(oq[p>>2]+(p&3))}, {v(r0)}, {v(r1)}")
            for i in range(4):
                q = oq[i >> 1] + 2 * (i & 1)
                A(f"buffer_store_dwordx2 {v(q,2)}, {v(vt[2])}, {s(srdD,4)}, {s(sT[4])} offen offset:{16*i}")
```

```python
import os
import sys
sys.path.insert(0, os.path.dirname(os.path.abspath(__file__)))
from asmlib import *
from layout import *
import k_gemm
from k_gemm import Cfg, emit_gemm, epi_qk, epi_v, epi_h, epi_b, epi_out, pre_out, make_dep_wait, pre_final, epi_final
from k_gate import emit_gate
import k_attn
from k_attn import emit_attn
import k_attn2
from k_attn2 import emit_attn2

DIAG = "diag" in sys.argv
K1BK = int(os.environ.get("K1BK", "64"))
K1NST = int(os.environ.get("K1NST", "3"))
NAME = "gated_mix__softmax_full_mha__dense_activation_squared_relu__prompt"
HERE = os.path.dirname(os.path.abspath(__file__))
OUT = os.path.join(HERE, "..", "cdna_kernels", NAME + ("_diag.s" if DIAG else ".s"))

HEADER = """; Kernarg layout for this problem (96 bytes, ptrs only, base s[0:1]):
"""


def cfg_qk():
    return Cfg(name="QK", WM=4, WN=2, WK=1, TM=2, TN=2, K=512, BK=K1BK, NST=K1NST, orient="T", wperm="id", max_vgpr=128,
               x_src=("karg", KA_X), x_size=SZ_X, x_stride=1024, x_col0=0,
               w_karg=KA_WQKV, w_size=SZ_WQKV, w_stride=3072, w_col0=0, nmblk=8,
               d_off=WS_QP, d_size=0x400000, bias_karg=None, bias_size=0, epilogue=epi_qk, diag=(0x4100000 if DIAG else None))


def cfg_v():
    return Cfg(name="V", WM=4, WN=2, WK=1, TM=2, TN=2, K=512, BK=K1BK, NST=K1NST, orient="N", wperm="id", max_vgpr=128,
               x_src=("karg", KA_X), x_size=SZ_X, x_stride=1024, x_col0=0,
               w_karg=KA_WQKV, w_size=SZ_WQKV, w_stride=3072, w_col0=1024, nmblk=8,
               d_off=WS_VP, d_size=0x200000, bias_karg=None, bias_size=0, epilogue=epi_v, diag=(0x4100000 if DIAG else None))


def cfg_f1():
    return Cfg(name="F1", WM=4, WN=2, WK=1, TM=2, TN=2, K=512, BK=K1BK, NST=K1NST, orient="T", wperm="id", max_vgpr=128,
               x_src=("karg", KA_X), x_size=SZ_X, x_stride=1024, x_col0=0,
               w_karg=KA_W1, w_size=SZ_W1, w_stride=3584, w_col0=0, nmblk=8,
               d_off=WS_H, d_size=S_TOK * F * 2, bias_karg=KA_B1, bias_size=SZ_B1, epilogue=epi_h, diag=(0x4100000 if DIAG else None))


def build_k1():
    A = Asm()
    name = "k1_proj_kernel"
    total = 240
    A(f"s_cmp_ge_u32 s2, {total}")
    A("s_cbranch_scc1 k1_exit")
    A("s_cmp_ge_u32 s2, 208")
    A("s_cbranch_scc1 k1_role_G")
    A("s_and_b32 s4, s2, 7")
    A("s_lshr_b32 s5, s2, 3")
    A("s_and_b32 s6, s4, 3")
    A("s_lshl_b32 s6, s6, 1")
    A("s_and_b32 s7, s5, 1")
    A("s_add_u32 s6, s6, s7")
    A("s_lshr_b32 s7, s4, 2")
    A("s_mul_i32 s7, s7, 13")
    A("s_lshr_b32 s5, s5, 1")
    A("s_add_u32 s7, s7, s5")
    A("s_cmp_lt_u32 s7, 8")
    A("s_cbranch_scc1 k1_role_QK")
    A("s_cmp_lt_u32 s7, 12")
    A("s_cbranch_scc1 k1_role_V")
    A("s_branch k1_role_F1")
    A.label("k1_exit")
    A("s_endpgm")
    vmax, smax = 8, 8
    for r, sub in (("QK", 0), ("V", 8), ("F1", 12)):
        A.label(f"k1_role_{r}")
        A(f"s_sub_u32 s7, s7, {sub}")
        A("s_lshl_b32 s7, s7, 3")
        A("s_add_u32 s3, s7, s6")
        cfg = {"QK": cfg_qk, "V": cfg_v, "F1": cfg_f1}[r]()
        vh, sh = emit_gemm(A, cfg, 3)
        vmax, smax = max(vmax, vh), max(smax, sh)
    A.label("k1_role_G")
    A("s_sub_u32 s3, s2, 208")
    vh, sh = emit_gate(A, 3)
    vmax, smax = max(vmax, vh), max(smax, sh)
    lds = K1NST * (256 * K1BK * 2 + K1BK * 256)
    launch = f"; @launch kernel={name} grid=({total},1,1) block=(512,1,1) lds={lds}"
    text = kernel_header(name) + A.text() + kernel_descriptor(name, vmax, smax + 6)
    return launch, text


def build_k2m():
    A = Asm()
    name = "k2_mix_kernel"
    A("s_cmp_ge_u32 s2, 512")
    A("s_cbranch_scc1 k2_exit")
    A("s_cmp_ge_u32 s2, 256")
    A("s_cbranch_scc1 k2_role_F2")
    A("s_branch k2_role_A")
    A.label("k2_exit")
    A("s_endpgm")
    A.label("k2_role_A")
    A("s_mov_b32 s3, s2")
    vh, sh = emit_attn2(A, 3, diag=DIAG)
    A.label("k2_role_F2")
    A("s_sub_u32 s3, s2, 256")
    cfg = cfg_f2()
    if os.environ.get("FPRIO"):
        cfg.loop_prio = int(os.environ.get("FPRIO"))
    vh2, sh2 = emit_gemm(A, cfg, 3)
    vh, sh = max(vh, vh2), max(sh, sh2)
    lds = max(k_attn2.LDS_TOTAL, cfg.lds_bytes)
    assert lds <= 81920
    lds = 81920
    launch = f"; @launch kernel={name} grid=(512,1,1) block=(512,1,1) lds={lds}"
    text = kernel_header(name) + A.text() + kernel_descriptor(name, vh, sh + 6)
    return launch, text


def cfg_f2():
    return Cfg(name="F2", WM=2, WN=2, WK=2, TM=1, TN=1, K=1792, orient="T", wperm="hperm", max_vgpr=128,
               x_src=("ws", WS_H), x_size=S_TOK * F * 2, x_stride=3584, x_col0=0,
               w_karg=KA_W2, w_size=SZ_W2, w_stride=1024, w_col0=0, nmblk=32,
               d_off=WS_B, d_size=0x200000, bias_karg=KA_B2, bias_size=SZ_B2, epilogue=epi_b, NST=5, diag=(0x4200000 if DIAG else None))


def cfg_out():
    return Cfg(name="OUT", WM=2, WN=2, WK=2, TM=1, TN=1, K=512, orient="T", wperm="operm", max_vgpr=128,
               x_src=("ws", WS_O), x_size=0x200000, x_stride=1024, x_col0=0,
               w_karg=KA_WO, w_size=SZ_WO, w_stride=1024, w_col0=0, nmblk=32,
               d_off=None, d_size=SZ_OUT, bias_karg=None, bias_size=0, epilogue=epi_out, pre_epilogue=pre_out, x_layout="ofrag", NST=int(os.environ.get("K4NST", "5")), diag=(0x4300000 if DIAG else None))


def build_simple_gemm(name, cfg, nwg):
    A = Asm()
    A(f"s_cmp_ge_u32 s2, {nwg}")
    A(f"s_cbranch_scc1 {name}_exit")
    A(f"s_branch {name}_role")
    A.label(f"{name}_exit")
    A("s_endpgm")
    A.label(f"{name}_role")
    A("s_mov_b32 s3, s2")
    vh, sh = emit_gemm(A, cfg, 3)
    lds = cfg.lds_bytes
    launch = f"; @launch kernel={name} grid=({nwg},1,1) block=(512,1,1) lds={lds}"
    text = kernel_header(name) + A.text() + kernel_descriptor(name, vh, sh + 6)
    return launch, text


def build_k3():
    return build_simple_gemm("k3_ffn2_kernel", cfg_f2(), 256)


def build_k4():
    return build_simple_gemm("k4_out_kernel", cfg_out(), 256)


def main():
    launches, texts = [], []
    for b in (build_k1, build_k2m, build_k4):
        l, t = b()
        launches.append(l)
        texts.append(t)
    out = HEADER + "\n".join(launches) + "\n" + '.amdgcn_target "amdgcn-amd-amdhsa--gfx950"\n' + "\n".join(texts)
    with open(OUT, "w") as f:
        f.write(out)
    print("wrote", OUT, len(out), "bytes")


if __name__ == "__main__":
    main()
```

```python
from asmlib import *
from layout import *
import os
STF = os.environ.get('STF', '')

RING = 4
SLOT = 16384
LDS_SCR = RING * SLOT
LDS_TOTAL = LDS_SCR + 64
WS_DIAG = 0x4000000


def emit_attn2(A, s_idx, max_vgpr=128, diag=False, signal=False):
    NW = 8
    NI = 64
    CPI = 8
    NCH = 8
    NTW = 8

    V = Regs("v", 1, max_vgpr)
    S = Regs("s", 4, 96)
    sPWS = S.alloc(2, 2)
    sPB = S.alloc(2, 2)
    srdQ = S.alloc(4, 4)
    srdK = S.alloc(4, 4)
    srdV = S.alloc(4, 4)
    srdO = S.alloc(4, 4)
    s_wave = S.alloc()
    s_head = S.alloc()
    s_qblk = S.alloc()
    s_hoff = S.alloc()
    s_dsrc = S.alloc()
    s_dlds = S.alloc()
    sMaskV = S.alloc(2, 2)
    sT = [S.alloc() for _ in range(8)]
    sCnt = S.alloc()
    sStamp = [S.alloc(2, 2) for _ in range(7)] if diag else None

    def stamp(k):
        if diag:
            A(f"s_memtime {s(sStamp[k],2)}" if k < 5 else f"s_memrealtime {s(sStamp[k],2)}")
            A("s_waitcnt lgkmcnt(0)")

    Sb = [V.alloc(16, 4), V.alloc(16, 4)]
    Cb = V.alloc(16, 4)
    Ob = V.alloc(16, 4)
    Pb = V.alloc(8, 4)
    PIPE2 = os.environ.get('PIPE2', '1') == '1'
    Pb2 = [Pb, V.alloc(8, 4)] if PIPE2 else [Pb, Pb]
    Qf = V.alloc(4, 4)
    Kf = [V.alloc(4, 4), V.alloc(4, 4)]
    Vf = [[V.alloc(4, 4), V.alloc(4, 4)], [V.alloc(4, 4), V.alloc(4, 4)]]
    vKa = V.alloc()
    vVa = V.alloc()
    v_lane = V.alloc()
    v_hh = V.alloc()
    vt = [V.alloc() for _ in range(8)]
    v_l16 = vKa

    A.c("==== attention role (ring staged, 8 waves)")
    if os.environ.get("APRIO"):
        A(f"s_setprio {os.environ.get('APRIO')}")
    stamp(0)
    stamp(5)
    A(f"s_load_dwordx2 {s(sPWS,2)}, s[0:1], {KA_WS}")
    A(f"v_lshrrev_b32 {v(vt[0])}, 6, v0")
    A(f"v_and_b32 {v(v_lane)}, 63, v0")
    A("s_nop 0")
    A(f"v_readfirstlane_b32 {s(s_wave)}, {v(vt[0])}")
    A(f"v_lshrrev_b32 {v(v_hh)}, 5, {v(v_lane)}")
    A(f"v_lshlrev_b32 {v(v_l16)}, 4, {v(v_lane)}")
    A(f"s_and_b32 {s(s_head)}, {s(s_idx)}, 31")
    A(f"s_lshr_b32 {s(s_qblk)}, {s(s_idx)}, 5")
    A(f"s_mov_b32 {s(sMaskV)}, 0x0000ffff")
    A(f"s_mov_b32 {s(sMaskV+1)}, 0x0000ffff")
    A("s_waitcnt lgkmcnt(0)")
    for srd, off in ((srdQ, WS_QP), (srdK, WS_KP), (srdV, WS_VP), (srdO, WS_O)):
        A.add64(sPB, sPWS, off)
        A.srd(srd, sPB, 0x200000)
    A(f"s_lshl_b32 {s(s_hoff)}, {s(s_head)}, 16")
    A(f"s_lshl_b32 {s(s_dlds)}, {s(s_wave)}, 10")
    A(f"s_add_u32 {s(s_dsrc)}, {s(s_dlds)}, {s(s_hoff)}")

    def dma_chunk(c):
        slot = (c % RING) * SLOT
        A(f"s_add_u32 m0, {s(s_dlds)}, {slot}")
        A(f"s_add_u32 {s(sT[4])}, {s(s_dsrc)}, {c*8192}")
        A(f"buffer_load_dwordx4 {v(v_l16)}, {s(srdK,4)}, {s(sT[4])} offen lds")
        A(f"s_add_u32 m0, {s(s_dlds)}, {slot + 8192}")
        A("s_nop 0")
        A(f"buffer_load_dwordx4 {v(v_l16)}, {s(srdV,4)}, {s(sT[4])} offen lds")

    Kn = [Sb[0] + 4 * j for j in range(4)] + [Sb[1] + 4 * j for j in range(4)]
    A(f"s_lshl_b32 {s(sT[0])}, {s(s_qblk)}, 3")
    A(f"s_add_u32 {s(sT[0])}, {s(sT[0])}, {s(s_wave)}")
    A(f"s_lshl_b32 {s(sT[0])}, {s(sT[0])}, 10")
    A(f"s_add_u32 {s(sT[0])}, {s(sT[0])}, {s(s_hoff)}")
    A(f"buffer_load_dwordx4 {v(Qf,4)}, {v(v_l16)}, {s(srdQ,4)}, {s(sT[0])} offen")
    A(f"s_lshl_b32 {s(sT[0])}, {s(s_wave)}, 13")
    A(f"s_add_u32 {s(sT[0])}, {s(sT[0])}, {s(s_hoff)}")
    for j in range(NTW):
        A(f"s_add_u32 {s(sT[1])}, {s(sT[0])}, {j*1024}")
        A(f"buffer_load_dwordx4 {v(Kn[j],4)}, {v(v_l16)}, {s(srdK,4)}, {s(sT[1])} offen")
    for c in range(RING - 1):
        dma_chunk(c)
    A(f"v_and_b32 {v(vt[0])}, 15, {v(v_lane)}")
    A(f"v_lshlrev_b32 {v(vt[1])}, 4, {v(v_hh)}")
    A(f"v_add_u32 {v(vt[0])}, {v(vt[0])}, {v(vt[1])}")
    A(f"v_lshlrev_b32 {v(vt[0])}, 4, {v(vt[0])}")
    A(f"v_add_u32 {v(vVa)}, 8192, {v(vt[0])}")
    A(f"v_and_b32 {v(vt[0])}, 31, {v(v_lane)}")
    A(f"v_cmp_eq_u32 vcc, 16, {v(vt[0])}")
    A(f"v_mov_b32 {v(vt[1])}, 0x3f803f80")
    A("s_nop 1")
    A(f"v_cndmask_b32 {v(vt[2])}, 0, {v(vt[1])}, vcc")
    for bsel in range(2):
        for m in range(2):
            for r in range(4):
                A(f"v_mov_b32 {v(Vf[bsel][m]+r)}, {v(vt[2])}")
    for r in range(16):
        A(f"v_mov_b32 {v(Ob+r)}, 0")

    def sq_sum(dst, src4):
        A(f"v_mov_b32 {v(dst)}, 0")
        for p in range(4):
            A(f"v_lshlrev_b32 {v(vt[6])}, 16, {v(src4+p)}")
            A(f"v_and_b32 {v(vt[7])}, 0xffff0000, {v(src4+p)}")
            A(f"v_fma_f32 {v(dst)}, {v(vt[6])}, {v(vt[6])}, {v(dst)}")
            A(f"v_fma_f32 {v(dst)}, {v(vt[7])}, {v(vt[7])}, {v(dst)}")

    def half_sum(x, t):
        A(f"v_mov_b32 {v(t)}, {v(x)}")
        A("s_nop 1")
        A(f"v_permlane32_swap_b32 {v(t)}, {v(x)}")
        A("s_nop 1")
        A(f"v_add_f32 {v(x)}, {v(x)}, {v(t)}")

    ndma0 = 2 * (RING - 1)
    A(f"s_waitcnt vmcnt({ndma0})")
    for j in range(NTW):
        sq_sum(vt[0], Kn[j])
        half_sum(vt[0], vt[1])
        if j == 0:
            A(f"v_mov_b32 {v(vt[2])}, {v(vt[0])}")
        else:
            A(f"v_max_f32 {v(vt[2])}, {v(vt[2])}, {v(vt[0])}")
    sq_sum(vt[3], Qf)
    half_sum(vt[3], vt[1])
    A("s_nop 1")
    A(f"v_max_f32_dpp {v(vt[0])}, {v(vt[2])}, {v(vt[2])} quad_perm:[1,0,3,2] row_mask:0xf bank_mask:0xf")
    A("s_nop 1")
    A(f"v_max_f32_dpp {v(vt[1])}, {v(vt[0])}, {v(vt[0])} quad_perm:[2,3,0,1] row_mask:0xf bank_mask:0xf")
    A("s_nop 1")
    A(f"v_max_f32_dpp {v(vt[0])}, {v(vt[1])}, {v(vt[1])} row_half_mirror row_mask:0xf bank_mask:0xf")
    A("s_nop 1")
    A(f"v_max_f32_dpp {v(vt[1])}, {v(vt[0])}, {v(vt[0])} row_mirror row_mask:0xf bank_mask:0xf")
    A("s_nop 1")
    A(f"v_readlane_b32 {s(sT[0])}, {v(vt[1])}, 0")
    A(f"v_readlane_b32 {s(sT[1])}, {v(vt[1])}, 16")
    A(f"v_readlane_b32 {s(sT[2])}, {v(vt[1])}, 32")
    A(f"v_readlane_b32 {s(sT[3])}, {v(vt[1])}, 48")
    A("s_nop 3")
    A(f"s_max_u32 {s(sT[0])}, {s(sT[0])}, {s(sT[1])}")
    A(f"s_max_u32 {s(sT[2])}, {s(sT[2])}, {s(sT[3])}")
    A(f"s_max_u32 {s(sT[0])}, {s(sT[0])}, {s(sT[2])}")
    A(f"v_mov_b32 {v(vt[0])}, {s(sT[0])}")
    A(f"s_lshl_b32 {s(sT[1])}, {s(s_wave)}, 2")
    A(f"s_add_u32 {s(sT[1])}, {s(sT[1])}, {LDS_SCR}")
    A(f"v_mov_b32 {v(vt[1])}, {s(sT[1])}")
    A(f"ds_write_b32 {v(vt[1])}, {v(vt[0])}")
    A(f"s_waitcnt vmcnt({ndma0 - 2}) lgkmcnt(0)")
    A("s_barrier")
    stamp(1)
    A(f"v_mov_b32 {v(vt[1])}, {LDS_SCR}")
    A(f"ds_read_b128 {v(Sb[0],4)}, {v(vt[1])}")
    A(f"ds_read_b128 {v(Sb[0]+4,4)}, {v(vt[1])} offset:16")
    A(f"ds_read_b128 {v(Kf[0],4)}, {v(vKa)}")
    A(f"ds_read_b128 {v(Kf[1],4)}, {v(vKa)} offset:1024")
    A(f"s_mov_b64 exec, {s(sMaskV,2)}")
    A(f"ds_read_b128 {v(Vf[0][0],4)}, {v(vVa)}")
    A(f"ds_read_b128 {v(Vf[0][1],4)}, {v(vVa)} offset:512")
    A("s_mov_b64 exec, -1")
    A("s_waitcnt lgkmcnt(4)")
    A(f"v_max_f32 {v(vt[2])}, {v(Sb[0])}, {v(Sb[0]+1)}")
    for q in range(2, NW):
        A(f"v_max_f32 {v(vt[2])}, {v(vt[2])}, {v(Sb[0]+q)}")
    A(f"v_mul_f32 {v(vt[2])}, {v(vt[2])}, {v(vt[3])}")
    A(f"v_sqrt_f32 {v(vt[2])}, {v(vt[2])}")
    A("s_nop 0")
    A(f"v_mul_f32 {v(vt[2])}, 0x3f808000, {v(vt[2])}")
    A(f"v_add_f32 {v(vt[2])}, 0x35800000, {v(vt[2])}")
    for r in range(16):
        A(f"v_sub_f32 {v(Cb+r)}, 0, {v(vt[2])}")
    A("s_waitcnt lgkmcnt(2)")
    A("s_nop 1")
    A(f"v_mfma_f32_32x32x16_bf16 {v(Sb[0],16)}, {v(Kf[0],4)}, {v(Qf,4)}, {v(Cb,16)}")
    A.nop(12)
    stamp(2)

    def koff(t):
        return ((t // CPI) % RING) * SLOT + (t % CPI) * 1024

    for i in range(NI):
        A.c(f"-- tile {i}")
        cur, nxt = i & 1, (i + 1) & 1
        if (i + 2) % CPI == 0 and (i + 2) // CPI < NCH:
            c = (i + 2) // CPI
            A(f"s_waitcnt vmcnt({2 if c + 1 < NCH else 0})")
            A("s_barrier")
            if c + 2 < NCH:
                dma_chunk(c + 2)
        A("s_waitcnt lgkmcnt(0)")
        if not PIPE2:
            if i + 1 < NI:
                A(f"v_mfma_f32_32x32x16_bf16 {v(Sb[nxt],16)}, {v(Kf[nxt],4)}, {v(Qf,4)}, {v(Cb,16)}")
            if i + 2 < NI:
                A(f"ds_read_b128 {v(Kf[cur],4)}, {v(vKa)} offset:{koff(i+2)}")
            if i + 1 < NI:
                A(f"s_mov_b64 exec, {s(sMaskV,2)}")
                A(f"ds_read_b128 {v(Vf[nxt][0],4)}, {v(vVa)} offset:{koff(i+1)}")
                A(f"ds_read_b128 {v(Vf[nxt][1],4)}, {v(vVa)} offset:{koff(i+1)+512}")
                A("s_mov_b64 exec, -1")
            for r in range(16):
                A(f"v_exp_f32 {v(Sb[cur]+r)}, {v(Sb[cur]+r)}")
            for p in range(8):
                A(f"v_cvt_pk_bf16_f32 {v(Pb+p)}, {v(Sb[cur]+2*p)}, {v(Sb[cur]+2*p+1)}")
            A(f"v_mfma_f32_32x32x16_bf16 {v(Ob,16)}, {v(Vf[cur][0],4)}, {v(Pb,4)}, {v(Ob,16)}")
            A("s_nop 0")
            A(f"v_mfma_f32_32x32x16_bf16 {v(Ob,16)}, {v(Vf[cur][1],4)}, {v(Pb+4,4)}, {v(Ob,16)}")
        else:
            if i + 1 < NI:
                A(f"v_mfma_f32_32x32x16_bf16 {v(Sb[nxt],16)}, {v(Kf[nxt],4)}, {v(Qf,4)}, {v(Cb,16)}")
            if i + 2 < NI:
                A(f"ds_read_b128 {v(Kf[cur],4)}, {v(vKa)} offset:{koff(i+2)}")
            if i >= 1:
                A(f"s_mov_b64 exec, {s(sMaskV,2)}")
                A(f"ds_read_b128 {v(Vf[cur][0],4)}, {v(vVa)} offset:{koff(i)}")
                A(f"ds_read_b128 {v(Vf[cur][1],4)}, {v(vVa)} offset:{koff(i)+512}")
                A("s_mov_b64 exec, -1")
            for r in range(16):
                A(f"v_exp_f32 {v(Sb[cur]+r)}, {v(Sb[cur]+r)}")
                if i >= 1 and r == 4:
                    A(f"v_mfma_f32_32x32x16_bf16 {v(Ob,16)}, {v(Vf[nxt][0],4)}, {v(Pb2[nxt],4)}, {v(Ob,16)}")
                if i >= 1 and r == 10:
                    A(f"v_mfma_f32_32x32x16_bf16 {v(Ob,16)}, {v(Vf[nxt][1],4)}, {v(Pb2[nxt]+4,4)}, {v(Ob,16)}")
            for p in range(8):
                A(f"v_cvt_pk_bf16_f32 {v(Pb2[cur]+p)}, {v(Sb[cur]+2*p)}, {v(Sb[cur]+2*p+1)}")
    if PIPE2:
        last = (NI - 1) & 1
        A("s_waitcnt lgkmcnt(0)")
        A("s_nop 1")
        A(f"v_mfma_f32_32x32x16_bf16 {v(Ob,16)}, {v(Vf[last][0],4)}, {v(Pb2[last],4)}, {v(Ob,16)}")
        A(f"v_mfma_f32_32x32x16_bf16 {v(Ob,16)}, {v(Vf[last][1],4)}, {v(Pb2[last]+4,4)}, {v(Ob,16)}")
    A.nop(16)
    stamp(3)
    lab_norm = A.newlabel("Lnorm")
    A(f"v_mov_b32 {v(vt[1])}, {v(Ob+8)}")
    A("s_nop 1")
    A(f"v_permlane32_swap_b32 {v(vt[1])}, {v(Ob+8)}")
    A("s_nop 1")
    A(f"v_cmp_nle_f32 vcc, 0x12800000, {v(vt[1])}")
    A(f"s_cbranch_vccz {lab_norm}")
    A.c("---- fallback: running-max online softmax")
    vM = vt[2]
    A(f"v_mov_b32 {v(vM)}, 0xff7fffff")
    for r in range(16):
        A(f"v_mov_b32 {v(Ob+r)}, 0")
    A(f"v_subrev_u32 {v(vt[4])}, 8192, {v(vVa)}")
    A(f"s_mov_b32 {s(sCnt)}, 0")
    A(f"s_mov_b32 {s(sT[5])}, {s(s_hoff)}")
    lab_fb = A.newlabel("Lfb")
    A.label(lab_fb)
    A(f"buffer_load_dwordx4 {v(Kf[0],4)}, {v(v_l16)}, {s(srdK,4)}, {s(sT[5])} offen")
    A(f"s_mov_b64 exec, {s(sMaskV,2)}")
    A(f"buffer_load_dwordx4 {v(Vf[0][0],4)}, {v(vt[4])}, {s(srdV,4)}, {s(sT[5])} offen")
    A(f"buffer_load_dwordx4 {v(Vf[0][1],4)}, {v(vt[4])}, {s(srdV,4)}, {s(sT[5])} offen offset:512")
    A("s_mov_b64 exec, -1")
    A("s_waitcnt vmcnt(0)")
    A("s_nop 1")
    A(f"v_mfma_f32_32x32x16_bf16 {v(Sb[0],16)}, {v(Kf[0],4)}, {v(Qf,4)}, 0")
    A.nop(16)
    A(f"v_max3_f32 {v(vt[0])}, {v(Sb[0])}, {v(Sb[0]+1)}, {v(Sb[0]+2)}")
    for r in range(3, 15, 2):
        A(f"v_max3_f32 {v(vt[0])}, {v(vt[0])}, {v(Sb[0]+r)}, {v(Sb[0]+r+1)}")
    A(f"v_max_f32 {v(vt[0])}, {v(vt[0])}, {v(Sb[0]+15)}")
    A(f"v_mov_b32 {v(vt[1])}, {v(vt[0])}")
    A("s_nop 1")
    A(f"v_permlane32_swap_b32 {v(vt[1])}, {v(vt[0])}")
    A("s_nop 1")
    A(f"v_max3_f32 {v(vt[0])}, {v(vt[0])}, {v(vt[1])}, {v(vM)}")
    A(f"v_sub_f32 {v(vt[1])}, {v(vM)}, {v(vt[0])}")
    A(f"v_exp_f32 {v(vt[1])}, {v(vt[1])}")
    A(f"v_mov_b32 {v(vM)}, {v(vt[0])}")
    for r in range(9):
        A(f"v_mul_f32 {v(Ob+r)}, {v(Ob+r)}, {v(vt[1])}")
    for r in range(16):
        A(f"v_sub_f32 {v(Sb[0]+r)}, {v(Sb[0]+r)}, {v(vM)}")
        A(f"v_exp_f32 {v(Sb[0]+r)}, {v(Sb[0]+r)}")
    A("s_nop 0")
    for p in range(8):
        A(f"v_cvt_pk_bf16_f32 {v(Pb+p)}, {v(Sb[0]+2*p)}, {v(Sb[0]+2*p+1)}")
    A("s_nop 1")
    A(f"v_mfma_f32_32x32x16_bf16 {v(Ob,16)}, {v(Vf[0][0],4)}, {v(Pb,4)}, {v(Ob,16)}")
    A(f"v_mfma_f32_32x32x16_bf16 {v(Ob,16)}, {v(Vf[0][1],4)}, {v(Pb+4,4)}, {v(Ob,16)}")
    A.nop(16)
    A(f"s_add_u32 {s(sT[5])}, {s(sT[5])}, 1024")
    A(f"s_add_u32 {s(sCnt)}, {s(sCnt)}, 1")
    A(f"s_cmp_lt_u32 {s(sCnt)}, 64")
    A(f"s_cbranch_scc1 {lab_fb}")
    A(f"v_mov_b32 {v(vt[1])}, {v(Ob+8)}")
    A("s_nop 1")
    A(f"v_permlane32_swap_b32 {v(vt[1])}, {v(Ob+8)}")
    A("s_nop 1")
    A.label(lab_norm)
    A(f"v_rcp_f32 {v(vt[2])}, {v(vt[1])}")
    A("s_nop 0")
    for r in range(8):
        A(f"v_mul_f32 {v(Ob+r)}, {v(Ob+r)}, {v(vt[2])}")
    for p in range(4):
        A(f"v_cvt_pk_bf16_f32 {v(Pb+p)}, {v(Ob+2*p)}, {v(Ob+2*p+1)}")
    A(f"v_lshlrev_b32 {v(vt[0])}, 4, {v(v_lane)}")
    A(f"s_lshl_b32 {s(sT[0])}, {s(s_qblk)}, 3")
    A(f"s_add_u32 {s(sT[0])}, {s(sT[0])}, {s(s_wave)}")
    A(f"s_lshl_b32 {s(sT[0])}, {s(sT[0])}, 5")
    A(f"s_add_u32 {s(sT[0])}, {s(sT[0])}, {s(s_head)}")
    A(f"s_lshl_b32 {s(sT[0])}, {s(sT[0])}, 10")
    if signal:
        A(f"buffer_store_dwordx4 {v(Pb,4)}, {v(vt[0])}, {s(srdO,4)}, {s(sT[0])} offen")
        A(f"s_load_dwordx2 {s(sPB,2)}, s[0:1], {KA_DBG}")
        A("s_waitcnt vmcnt(0) lgkmcnt(0)")
        A("s_barrier")
        lab_sig = A.newlabel("Lsig")
        A(f"s_cmp_lg_u32 {s(s_wave)}, 0")
        A(f"s_cbranch_scc1 {lab_sig}")
        A("buffer_wbl2 sc1")
        A("s_waitcnt vmcnt(0)")
        if diag and os.environ.get("FINE2"):
            stamp(1)
        A.srd(srdQ, sPB, 256)
        A(f"s_lshl_b32 {s(sT[2])}, {s(s_qblk)}, 2")
        A(f"v_mov_b32 {v(vt[1])}, 0")
        A(f"v_mov_b32 {v(vt[2])}, 1")
        A("s_mov_b64 exec, 1")
        A(f"buffer_atomic_add {v(vt[2])}, {v(vt[1])}, {s(srdQ,4)}, {s(sT[2])} offen sc1")
        A("s_mov_b64 exec, -1")
        A.label(lab_sig)
    else:
        A(f"buffer_store_dwordx4 {v(Pb,4)}, {v(vt[0])}, {s(srdO,4)}, {s(sT[0])} offen{STF}")
    if diag:
        stamp(4)
        stamp(6)
        A.add64(sPB, sPWS, WS_DIAG)
        A.srd(srdQ, sPB, 0x100000)
        A(f"s_lshl_b32 {s(sT[0])}, {s(s_idx)}, 4")
        A(f"s_add_u32 {s(sT[0])}, {s(sT[0])}, {s(s_wave)}")
        A(f"s_lshl_b32 {s(sT[0])}, {s(sT[0])}, 6")
        A(f"v_mov_b32 {v(vt[1])}, 0")
        A("s_mov_b64 exec, 1")
        for k in range(7):
            A(f"v_mov_b32 {v(vt[0])}, {s(sStamp[k])}")
            A(f"buffer_store_dword {v(vt[0])}, {v(vt[1])}, {s(srdQ,4)}, {s(sT[0])} offen offset:{4*k}")
    A("s_endpgm")
    return V.hi, S.hi
```
